```python
import torch

def _softmax(x, axis=-1):
    return torch.softmax(x, dim=axis)
def _gelu(x):
    return torch.nn.functional.gelu(x, approximate="tanh")
def _silu(x):
    return torch.nn.functional.silu(x)
def _sigmoid(x):
    return torch.sigmoid(x)
def _layernorm(x, axis=-1, eps=1e-5):
    m = x.mean(dim=axis, keepdim=True)
    v = x.var(dim=axis, keepdim=True, unbiased=False)
    return (x - m) / torch.sqrt(v + eps)
def _scatter_add(tgt, idx, src, axis=0):
    return tgt.clone().index_add_(axis, idx, src)
def _segment_sum(src, seg, n):
    out = torch.zeros((n,) + src.shape[1:], dtype=src.dtype)
    return out.index_add_(0, seg, src)
def _pad(x, pw):
    flat = tuple(v for pair in reversed(pw) for v in pair)
    return torch.nn.functional.pad(x, flat)

kernel_name = 'gated_mix__spectral_gfnet__mixer_token_mlp__prompt'

def setup_inputs():

    _w = (lambda a: (lambda t: t.to(torch.bfloat16) if t.is_floating_point() else t)(torch.as_tensor(a)))
    def _A_setup():
        B, S, D = 1, 2048, 576
        Df = D // 2 + 1
        return {
            "x": _w((lambda *s: torch.randn(*s, dtype=torch.bfloat16) * 0.05)(B, S, D)),
            "w_r": _w((lambda *s: torch.randn(*s, dtype=torch.bfloat16) * 1.6)(S, Df) * 0.02),
            "w_i": _w((lambda *s: torch.randn(*s, dtype=torch.bfloat16) * 1.6)(S, Df) * 0.02),
        }
    _A_in = _A_setup()

    def _B_setup():
        B, S, D, F = 1, 2048, 576, 4608
        return {
            "x": _w((lambda *s: torch.randn(*s, dtype=torch.bfloat16) * 0.05)(B, S, D)),
            "w1": _w((lambda *s: torch.randn(*s, dtype=torch.bfloat16) * 0.2)(S, F) * (S ** -0.5)),
            "b1": _w((lambda *s: torch.randn(*s, dtype=torch.bfloat16) * 3.2)(F) * 0.02),
            "w2": _w((lambda *s: torch.randn(*s, dtype=torch.bfloat16) * 0.05)(F, S) * (F ** -0.5)),
            "b2": _w((lambda *s: torch.randn(*s, dtype=torch.bfloat16) * 0.1)(S) * 0.02),
        }
    _B_in = _B_setup()

    return {
        "A_x": _A_in["x"],
        "A_w_r": _A_in["w_r"],
        "A_w_i": _A_in["w_i"],
        "B_x": _B_in["x"],
        "B_w1": _B_in["w1"],
        "B_b1": _B_in["b1"],
        "B_w2": _B_in["w2"],
        "B_b2": _B_in["b2"],
        "gate_w": _w((lambda *s: torch.randn(*s, dtype=torch.bfloat16) * 0.05)(576) * 16.0),
    }

def reference(A_x, A_w_r, A_w_i, B_x, B_w1, B_b1, B_w2, B_b2, gate_w):
    def _A_ref(x, w_r, w_i):
        B, S, D = x.shape
        X = (lambda x, axes=(-2,-1): torch.fft.rfft2(x.float(), dim=axes))(x, axes=(-2, -1))
        W = w_r + 1j * w_i
        X = X * W
        y = (lambda x, s, axes=(-2,-1): torch.fft.irfft2(x, s=s, dim=axes).to(torch.bfloat16))(X, (S, D), axes=(-2, -1))
        return y

    def _B_ref(x, w1, b1, w2, b2):
        B, S, D = x.shape
        h = _layernorm(x, axis=-1)
        u = torch.einsum("bsd,sf->bdf", h, w1) + b1
        u = _gelu(u)
        y = torch.einsum("bdf,fs->bds", u, w2) + b2
        return (lambda x, *d: x.permute(*d))(y, 0, 2, 1)

    x = A_x
    g = _sigmoid((x * gate_w).sum(-1, keepdims=True))
    a = _A_ref(x, A_w_r, A_w_i)
    b = _B_ref(x, B_w1, B_b1, B_w2, B_b2)
    return g * a + (1 - g) * b
```

```python
import re, struct

def f2u(x):
    return struct.unpack('<I', struct.pack('<f', x))[0]

def fl(x):
    return '0x%08x' % f2u(x)

def vr(a, n=1, k='v'):
    return f'{k}{a}' if n == 1 else f'{k}[{a}:{a+n-1}]'

def sr(a, n=1):
    return vr(a, n, 's')

def ar(a, n=1):
    return vr(a, n, 'a')

_REG = re.compile(r'^(-?\|?)([vas])(?:(\d+)|\[(\d+):(\d+)\])\|?$')

def regs_of(op):
    op = op.strip()
    if op in ('vcc',):
        return {('s', 'vcc')}
    if op in ('exec',):
        return {('s', 'exec')}
    if op == 'm0':
        return {('s', 'm0')}
    m = _REG.match(op)
    if not m:
        return set()
    k = m.group(2)
    if m.group(3) is not None:
        return {(k, int(m.group(3)))}
    return {(k, i) for i in range(int(m.group(4)), int(m.group(5)) + 1)}

TRANS = ('v_exp_f32', 'v_log_f32', 'v_rcp_f32', 'v_rsq_f32', 'v_sqrt_f32', 'v_sin_f32', 'v_cos_f32')

class Ins:
    def __init__(self, text):
        self.text = text
        t = text.split(';')[0].strip()
        self.label = t.endswith(':')
        self.mn = ''
        self.kind = 'other'
        self.w = set(); self.r = set(); self.srcc = set(); self.ab = set()
        self.slots = 1
        self.dpp = False
        self.sdata = set()
        self.lds = False
        if self.label or not t or t.startswith('.'):
            self.slots = 0
            return
        p = t.split(None, 1)
        self.mn = mn = p[0]
        rest = p[1] if len(p) > 1 else ''
        raw = [x.strip() for x in rest.split(',')]
        ops = []
        mods = ''
        rest2 = re.sub(r'(\w+):\[[^\]]*\]', lambda m: m.group(0).replace(',', '.'), rest)
        raw = [x.strip() for x in rest2.split(',')]
        for x in raw:
            q = x.split()
            if not q: continue
            ops.append(q[0])
            mods += ' ' + ' '.join(q[1:])
        self.ops = ops
        R = [regs_of(o) for o in ops]
        U = lambda l: set().union(*l) if l else set()
        if mn == 's_nop':
            self.kind = 'nop'; self.slots = int(ops[0], 0) + 1
        elif mn.startswith('v_mfma'):
            self.kind = 'mfma'
            self.passes = 8 if '32x32' in mn else 4
            self.w = R[0]; self.ab = R[1] | R[2]; self.srcc = R[3]; self.r = self.ab | self.srcc
        elif mn.startswith('v_'):
            self.kind = 'valu'
            self.dpp = ('_dpp' in mn) or ('row_' in mods) or ('quad_perm' in mods)
            if mn.startswith('v_permlane') and 'swap' in mn:
                self.w = R[0] | R[1]; self.r = R[0] | R[1]
            elif mn.startswith('v_cmpx'):
                self.w = {('s', 'exec')} | R[0]; self.r = U(R[1:])
            elif re.match(r'v_(add|sub|subrev|addc|subb)_co', mn):
                self.w = R[0] | R[1]; self.r = U(R[2:])
            else:
                self.w = R[0]; self.r = U(R[1:])
                if mn.startswith(('v_fmac', 'v_mac', 'v_dot2c', 'v_writelane')) or self.dpp:
                    self.r |= R[0]
                if mn.startswith('v_cndmask') and len(ops) == 3:
                    self.r |= {('s', 'vcc')}
        elif mn.startswith('ds_'):
            self.kind = 'ds'
            if mn.startswith(('ds_read', 'ds_bpermute', 'ds_permute', 'ds_swizzle')):
                self.w = R[0]; self.r = U(R[1:])
            else:
                self.r = U(R)
            if 'addtid' in mn: self.lds = True
        elif mn.startswith(('buffer_', 'global_')):
            self.kind = 'vmem'
            self.lds = bool(re.search(r'\blds\b', mods)) or '_lds_' in mn
            if 'load' in mn and not self.lds:
                self.w = R[0]; self.r = U(R[1:])
            else:
                self.r = U(R)
                if 'store' in mn and ('x3' in mn or 'x4' in mn):
                    self.sdata = R[0] if mn.startswith('buffer_') else R[1]
        elif mn.startswith('s_'):
            self.kind = 'salu'
            if mn.startswith(('s_cmp', 's_cbranch', 's_branch', 's_waitcnt', 's_barrier', 's_endpgm', 's_setprio', 's_sleep', 's_bitcmp')):
                self.r = U(R)
            else:
                self.w = R[0] if R else set(); self.r = U(R[1:])
                if 'saveexec' in mn: self.w |= {('s', 'exec')}

def need(p, c):
    n = 0
    vec = lambda S: {x for x in S if x[0] in 'va'}
    sc = lambda S: {x for x in S if x[0] == 's'}
    if p.kind == 'valu':
        if c.kind == 'mfma' and vec(p.w) & c.r: n = max(n, 2)
        if c.kind == 'mfma' and ('s', 'exec') in p.w: n = max(n, 4)
        if c.kind == 'vmem' and sc(p.w) & c.r: n = max(n, 5)
        if c.kind == 'valu':
            if c.dpp and vec(p.w) & c.r: n = max(n, 2)
            if c.dpp and ('s', 'exec') in p.w: n = max(n, 5)
            if sc(p.w) & c.r: n = max(n, 4 if 'lane' in c.mn else 2)
            if ('s', 'exec') in p.w and 'lane' in c.mn: n = max(n, 4)
            if c.mn.startswith(('v_readlane', 'v_readfirstlane')) and vec(p.w) & c.r: n = max(n, 1)
            if c.mn.startswith('v_permlane') and vec(p.w) & c.r: n = max(n, 2)
            if p.mn.startswith(TRANS) and vec(p.w) & c.r: n = max(n, 1)
            if 'op_sel' in p.text and not p.mn.startswith('v_pk') and vec(p.w) & (c.r | c.w): n = max(n, 1)
    if p.kind == 'mfma':
        big = p.passes == 8
        if c.kind == 'mfma':
            if p.w & c.ab: n = max(n, 12 if big else 8)
            if p.w & c.srcc and not (p.w == c.srcc and p.passes == c.passes): n = max(n, 10 if big else 6)
        elif c.kind in ('valu', 'vmem', 'ds'):
            if p.w & (c.r | c.w): n = max(n, 12 if big else 8)
            if c.kind == 'valu' and p.srcc & c.w: n = max(n, 7 if big else 3)
    if p.kind == 'vmem' and p.sdata:
        if p.sdata & c.w: n = max(n, 2 if c.kind == 'valu' else 1)
    if p.kind == 'salu' and ('s', 'm0') in p.w and c.lds: n = max(n, 1)
    return n

class Asm:
    def __init__(self):
        self.L = []
        self.n = 0
    def __call__(self, s):
        for line in s.split('\n'):
            line = line.strip()
            if line: self.L.append(line)
    def lab(self, base='L'):
        self.n += 1
        return f'.{base}_{self.n}'
    def fix(self):
        out = []
        for t in self.L:
            c = Ins(t)
            if c.slots:
                d = 0; req = 0
                for p in reversed(out):
                    if d >= 13: break
                    if p.slots == 0: continue
                    if p.mn in ('s_branch', 's_endpgm'): break
                    req = max(req, need(p, c) - d)
                    d += p.slots
                if req > 0:
                    out.append(Ins(f's_nop {req-1}'))
            out.append(c)
        pos = {i.text.split(':')[0].strip(): k for k, i in enumerate(out) if i.label}
        for k, b in enumerate(out):
            if b.mn.startswith(('s_cbranch', 's_branch')):
                tgt = pos[b.ops[0]]
                pre = []; d = 0
                for p in reversed(out[:k + 1]):
                    if d >= 13: break
                    if p.slots == 0: continue
                    if p is not b and p.mn in ('s_branch', 's_endpgm'): break
                    pre.append((p, d)); d += p.slots
                e = 0
                for c in out[tgt:]:
                    if e >= 13: break
                    if c.slots == 0: continue
                    for p, d in pre:
                        if need(p, c) > d + e:
                            raise RuntimeError(f'hazard across branch {b.text}: {p.text} -> {c.text}')
                    if c.mn in ('s_branch', 's_endpgm'): break
                    e += c.slots
        return '\n'.join((i.text if i.label else '    ' + i.text) for i in out)

def interleave(main, fill, per=None):
    out = []
    n = len(main); m = len(fill); k = 0
    for i, x in enumerate(main):
        out.append(x)
        tgt = (m * (i + 1) + n - 1) // n if per is None else min(m, per * (i + 1))
        while k < tgt:
            out.append(fill[k]); k += 1
    out += fill[k:]
    return out
```

```python
from asmlib import *
S, D, F = 2048, 576, 4608
HT_OFF, HT_SZ = 0, 6*2*64*3*1024
X1_OFF, X1_SZ = HT_OFF + HT_SZ, 288*8192
U_OFF, U_SZ = X1_OFF + X1_SZ, 6*2*144*3*1024
Z_OFF, Z_SZ = U_OFF + U_SZ, 576*4096
G_OFF, G_SZ = Z_OFF + Z_SZ, 2048*8
FL_OFF, FL_SZ = G_OFF + G_SZ, 64*128
XB_OFF, XB_SZ = FL_OFF + FL_SZ, 64*16*9216
WT_OFF, WT_SZ = XB_OFF + XB_SZ, 289*8192
TS_OFF = WT_OFF + WT_SZ
LOG2E = 1.4426950408889634

def srd(a, d, base, size, off=0):
    if off:
        a(f's_add_u32 s{d}, s{base}, {off}')
        a(f's_addc_u32 s{d+1}, s{base+1}, 0')
    else:
        a(f's_mov_b32 s{d}, s{base}')
        a(f's_mov_b32 s{d+1}, s{base+1}')
    a(f's_mov_b32 s{d+2}, {size}')
    a(f's_mov_b32 s{d+3}, 0x20000')

def kernel_head(name):
    return f'.globl {name}\n.p2align 8\n.type {name},@function\n{name}:\n'

def kernel_desc(name, vgpr, accum, sgpr=96):
    return f'''.amdhsa_kernel {name}
  .amdhsa_next_free_vgpr {vgpr}
  .amdhsa_next_free_sgpr {sgpr}
  .amdhsa_accum_offset {accum}
  .amdhsa_group_segment_fixed_size 0
  .amdhsa_kernarg_size 96
  .amdhsa_user_sgpr_count 2
  .amdhsa_user_sgpr_kernarg_segment_ptr 1
  .amdhsa_system_sgpr_workgroup_id_x 1
  .amdhsa_float_denorm_mode_32 3
.end_amdhsa_kernel
'''

def bf16r2(a, x, y, t):
    a(f'v_cvt_pk_bf16_f32 v{t}, v{x}, v{y}')
    a(f'v_lshlrev_b32 v{x}, 16, v{t}')
    a(f'v_and_b32 v{y}, 0xffff0000, v{t}')

def cos_table(a, dst_frags, step, base, st, mult, offs, dT, base_odd=None):
    o = []
    P, C = st, st + 8
    base0 = base
    o.append(f'v_mul_f32 v{mult}, {fl(float(dT))}, v{step}')
    o.append(f'v_cos_f32 v{mult}, v{mult}')
    for T, R in ((0, P), (1, C)):
        for j in range(8):
            k = offs[j] + dT * T
            base = base_odd if (base_odd is not None and j & 1) else base0
            if k == 0:
                o.append(f'v_mov_b32 v{R+j}, v{base}')
            else:
                o.append(f'v_fmamk_f32 v{R+j}, v{step}, {fl(float(k))}, v{base}')
        for j in range(8):
            o.append(f'v_cos_f32 v{R+j}, v{R+j}')
        if T == 0:
            o.append(f'v_add_f32 v{mult}, v{mult}, v{mult}')
    for T, R in ((0, P), (1, C)):
        for j in range(4):
            o.append(f'v_cvt_pk_bf16_f32 v{dst_frags[T]+j}, v{R+2*j}, v{R+2*j+1}')
    for T in range(2, len(dst_frags)):
        for j in range(4):
            o.append(f'v_pk_fma_f32 {vr(P+2*j,2)}, {vr(mult,2)}, {vr(C+2*j,2)}, {vr(P+2*j,2)} op_sel_hi:[0,1,1] neg_lo:[0,0,1] neg_hi:[0,0,1]')
        for j in range(4):
            o.append(f'v_cvt_pk_bf16_f32 v{dst_frags[T]+j}, v{P+2*j}, v{P+2*j+1}')
        P, C = C, P
    return o

def ts(a, opt, i):
    if opt.get('ts'):
        a(f's_memrealtime s[{80+2*i}:{81+2*i}]')

def ts_init(a, opt):
    if opt.get('ts'):
        for i in range(8):
            a(f's_mov_b64 s[{80+2*i}:{81+2*i}], 0')
        a('s_mov_b32 s79, s2')
        ts(a, opt, 0)

def ts_flush(a, opt, kidx, wsp, swave):
    if not opt.get('ts'): return
    a('s_waitcnt vmcnt(0)')
    ts(a, opt, 7)
    srd(a, 72, wsp, 4*256*8*64, TS_OFF)
    a(f's_lshl_b32 s78, s79, 3')
    a(f's_add_u32 s78, s78, s{swave}')
    a(f's_lshl_b32 s78, s78, 6')
    a(f's_add_u32 s78, s78, {kidx*256*8*64}')
    a('s_waitcnt lgkmcnt(0)')
    a('s_mov_b64 exec, 1')
    a('v_mov_b32 v0, 0')
    for i in range(8):
        a(f'v_mov_b32 v2, s{80+2*i}')
        a(f'v_mov_b32 v3, s{81+2*i}')
        a(f'buffer_store_dwordx2 v[2:3], v0, s[72:75], s78 offen offset:{8*i}')

def clk0(a, opt):
    if opt.get('ts'): a('s_memtime s[76:77]')
def clk1(a, opt):
    if opt.get('ts'):
        a('s_memtime s[92:93]')
        a('s_waitcnt lgkmcnt(0)')
        a('s_sub_u32 s92, s92, s76')
        a('s_subb_u32 s93, s93, s77')
```

```python
import sys, os, importlib
sys.path.insert(0, os.path.dirname(os.path.abspath(__file__)))
from common import *

def build(mods, opt):
    ref = open('gated_mix__spectral_gfnet__mixer_token_mlp__prompt.s.ref').read().split('\n')
    head = [l for l in ref if l.startswith(';') and '@launch' not in l and 'Override' not in l and 'grid=ceil' not in l]
    codes, descs, launches = [], [], []
    for m in mods:
        c, d, l = importlib.import_module(m).gen(opt)
        codes.append(c); descs.append(d); launches.append(l)
    if 'order' in opt: launches = [launches[ord(c) - 97] for c in opt['order']]
    return '\n'.join(head + launches) + '\n.amdgcn_target "amdgcn-amd-amdhsa--gfx950"\n.text\n' + '\n'.join(codes) + \
        '.section .rodata,"a"\n' + ''.join('.p2align 6\n' + d for d in descs)

if __name__ == '__main__':
    out = sys.argv[1]
    mods = sys.argv[2].split(',')
    opt = dict(x.split('=') for x in sys.argv[3:])
    opt = {k: int(v) if v.lstrip('-').isdigit() else v for k, v in opt.items()}
    open(out, 'w').write(build(mods, opt))
```

```python
from asmlib import *
S, D, F = 2048, 576, 4608
HT_OFF, HT_SZ = 0, 6*2*64*3*1024
X1_OFF, X1_SZ = HT_OFF + HT_SZ, 288*8192
U_OFF, U_SZ = X1_OFF + X1_SZ, 6*2*144*3*1024
Z_OFF, Z_SZ = U_OFF + U_SZ, 576*4096
G_OFF, G_SZ = Z_OFF + Z_SZ, 2048*8
FL_OFF, FL_SZ = G_OFF + G_SZ, 64*128
XB_OFF, XB_SZ = FL_OFF + FL_SZ, 64*16*9216
WT_OFF, WT_SZ = XB_OFF + XB_SZ, 289*8192
TS_OFF = WT_OFF + WT_SZ
LOG2E = 1.4426950408889634

def srd(a, d, base, size, off=0):
    if off:
        a(f's_add_u32 s{d}, s{base}, {off}')
        a(f's_addc_u32 s{d+1}, s{base+1}, 0')
    else:
        a(f's_mov_b32 s{d}, s{base}')
        a(f's_mov_b32 s{d+1}, s{base+1}')
    a(f's_mov_b32 s{d+2}, {size}')
    a(f's_mov_b32 s{d+3}, 0x20000')

def kernel_head(name):
    return f'.globl {name}\n.p2align 8\n.type {name},@function\n{name}:\n'

def kernel_desc(name, vgpr, accum, sgpr=96):
    return f'''.amdhsa_kernel {name}
  .amdhsa_next_free_vgpr {vgpr}
  .amdhsa_next_free_sgpr {sgpr}
  .amdhsa_accum_offset {accum}
  .amdhsa_group_segment_fixed_size 0
  .amdhsa_kernarg_size 96
  .amdhsa_user_sgpr_count 2
  .amdhsa_user_sgpr_kernarg_segment_ptr 1
  .amdhsa_system_sgpr_workgroup_id_x 1
  .amdhsa_float_denorm_mode_32 3
.end_amdhsa_kernel
'''

def bf16r2(a, x, y, t):
    a(f'v_cvt_pk_bf16_f32 v{t}, v{x}, v{y}')
    a(f'v_lshlrev_b32 v{x}, 16, v{t}')
    a(f'v_and_b32 v{y}, 0xffff0000, v{t}')

def cos_table(a, dst_frags, step, base, st, mult, offs, dT, base_odd=None, pk=True):
    o = []
    P, C = st, st + 8
    base0 = base
    o.append(f'v_mul_f32 v{mult}, {fl(float(dT))}, v{step}')
    o.append(f'v_cos_f32 v{mult}, v{mult}')
    for T, R in ((0, P), (1, C)):
        for j in range(8):
            k = offs[j] + dT * T
            base = base_odd if (base_odd is not None and j & 1) else base0
            if k == 0:
                o.append(f'v_mov_b32 v{R+j}, v{base}')
            else:
                o.append(f'v_fmamk_f32 v{R+j}, v{step}, {fl(float(k))}, v{base}')
        for j in range(8):
            o.append(f'v_cos_f32 v{R+j}, v{R+j}')
        if T == 0:
            o.append(f'v_add_f32 v{mult}, v{mult}, v{mult}')
    for T, R in ((0, P), (1, C)):
        for j in range(4):
            o.append(f'v_cvt_pk_bf16_f32 v{dst_frags[T]+j}, v{R+2*j}, v{R+2*j+1}')
    for T in range(2, len(dst_frags)):
        for j in range(4 if pk else 0):
            o.append(f'v_pk_fma_f32 {vr(P+2*j,2)}, {vr(mult,2)}, {vr(C+2*j,2)}, {vr(P+2*j,2)} op_sel_hi:[0,1,1] neg_lo:[0,0,1] neg_hi:[0,0,1]')
        for j in range(0 if pk else 8):
            o.append(f'v_fma_f32 v{P+j}, v{mult}, v{C+j}, -v{P+j}')
        for j in range(4):
            o.append(f'v_cvt_pk_bf16_f32 v{dst_frags[T]+j}, v{P+2*j}, v{P+2*j+1}')
        P, C = C, P
    return o

def ts(a, opt, i):
    if opt.get('ts'):
        a(f's_memrealtime s[{80+2*i}:{81+2*i}]')

def ts_init(a, opt):
    if opt.get('ts'):
        for i in range(8):
            a(f's_mov_b64 s[{80+2*i}:{81+2*i}], 0')
        a('s_mov_b32 s79, s2')
        ts(a, opt, 0)

def ts_flush(a, opt, kidx, wsp, swave):
    if not opt.get('ts'): return
    a('s_waitcnt vmcnt(0)')
    ts(a, opt, 7)
    srd(a, 72, wsp, 4*256*8*64, TS_OFF)
    a(f's_lshl_b32 s78, s79, 3')
    a(f's_add_u32 s78, s78, s{swave}')
    a(f's_lshl_b32 s78, s78, 6')
    a(f's_add_u32 s78, s78, {kidx*256*8*64}')
    a('s_waitcnt lgkmcnt(0)')
    a('s_mov_b64 exec, 1')
    a('v_mov_b32 v0, 0')
    for i in range(8):
        a(f'v_mov_b32 v2, s{80+2*i}')
        a(f'v_mov_b32 v3, s{81+2*i}')
        a(f'buffer_store_dwordx2 v[2:3], v0, s[72:75], s78 offen offset:{8*i}')

def clk0(a, opt):
    if opt.get('ts'): a('s_memtime s[76:77]')
def clk1(a, opt):
    if opt.get('ts'):
        a('s_memtime s[92:93]')
        a('s_waitcnt lgkmcnt(0)')
        a('s_sub_u32 s92, s92, s76')
        a('s_subb_u32 s93, s93, s77')
```

```python
import re, struct

def f2u(x):
    return struct.unpack('<I', struct.pack('<f', x))[0]

def fl(x):
    return '0x%08x' % f2u(x)

def vr(a, n=1, k='v'):
    return f'{k}{a}' if n == 1 else f'{k}[{a}:{a+n-1}]'

def sr(a, n=1):
    return vr(a, n, 's')

def ar(a, n=1):
    return vr(a, n, 'a')

_REG = re.compile(r'^(-?\|?)([vas])(?:(\d+)|\[(\d+):(\d+)\])\|?$')

def regs_of(op):
    op = op.strip()
    if op in ('vcc',):
        return {('s', 'vcc')}
    if op in ('exec',):
        return {('s', 'exec')}
    if op == 'm0':
        return {('s', 'm0')}
    m = _REG.match(op)
    if not m:
        return set()
    k = m.group(2)
    if m.group(3) is not None:
        return {(k, int(m.group(3)))}
    return {(k, i) for i in range(int(m.group(4)), int(m.group(5)) + 1)}

TRANS = ('v_exp_f32', 'v_log_f32', 'v_rcp_f32', 'v_rsq_f32', 'v_sqrt_f32', 'v_sin_f32', 'v_cos_f32')

class Ins:
    def __init__(self, text):
        self.text = text
        t = text.split(';')[0].strip()
        self.label = t.endswith(':')
        self.mn = ''
        self.kind = 'other'
        self.w = set(); self.r = set(); self.srcc = set(); self.ab = set()
        self.slots = 1
        self.dpp = False
        self.sdata = set()
        self.lds = False
        if self.label or not t or t.startswith('.'):
            self.slots = 0
            return
        p = t.split(None, 1)
        self.mn = mn = p[0]
        rest = p[1] if len(p) > 1 else ''
        raw = [x.strip() for x in rest.split(',')]
        ops = []
        mods = ''
        rest2 = re.sub(r'(\w+):\[[^\]]*\]', lambda m: m.group(0).replace(',', '.'), rest)
        raw = [x.strip() for x in rest2.split(',')]
        for x in raw:
            q = x.split()
            if not q: continue
            ops.append(q[0])
            mods += ' ' + ' '.join(q[1:])
        self.ops = ops
        R = [regs_of(o) for o in ops]
        U = lambda l: set().union(*l) if l else set()
        if mn == 's_nop':
            self.kind = 'nop'; self.slots = int(ops[0], 0) + 1
        elif mn.startswith('v_mfma'):
            self.kind = 'mfma'
            self.passes = 8 if '32x32' in mn else 4
            self.w = R[0]; self.ab = R[1] | R[2]; self.srcc = R[3]; self.r = self.ab | self.srcc
        elif mn.startswith('v_'):
            self.kind = 'valu'
            self.dpp = ('_dpp' in mn) or ('row_' in mods) or ('quad_perm' in mods)
            if mn.startswith('v_permlane') and 'swap' in mn:
                self.w = R[0] | R[1]; self.r = R[0] | R[1]
            elif mn.startswith('v_cmpx'):
                self.w = {('s', 'exec')} | R[0]; self.r = U(R[1:])
            elif re.match(r'v_(add|sub|subrev|addc|subb)_co', mn):
                self.w = R[0] | R[1]; self.r = U(R[2:])
            else:
                self.w = R[0]; self.r = U(R[1:])
                if mn.startswith(('v_fmac', 'v_mac', 'v_dot2c', 'v_writelane')) or self.dpp:
                    self.r |= R[0]
                if mn.startswith('v_cndmask') and len(ops) == 3:
                    self.r |= {('s', 'vcc')}
        elif mn.startswith('ds_'):
            self.kind = 'ds'
            if mn.startswith(('ds_read', 'ds_bpermute', 'ds_permute', 'ds_swizzle')) or '_rtn' in mn:
                self.w = R[0]; self.r = U(R[1:])
            else:
                self.r = U(R)
            if 'addtid' in mn: self.lds = True
        elif mn.startswith(('buffer_', 'global_')):
            self.kind = 'vmem'
            self.lds = bool(re.search(r'\blds\b', mods)) or '_lds_' in mn
            if 'load' in mn and not self.lds:
                self.w = R[0]; self.r = U(R[1:])
            else:
                self.r = U(R)
                if 'store' in mn and ('x3' in mn or 'x4' in mn):
                    self.sdata = R[0] if mn.startswith('buffer_') else R[1]
        elif mn.startswith('s_'):
            self.kind = 'salu'
            if mn.startswith(('s_cmp', 's_cbranch', 's_branch', 's_waitcnt', 's_barrier', 's_endpgm', 's_setprio', 's_sleep', 's_bitcmp')):
                self.r = U(R)
            else:
                self.w = R[0] if R else set(); self.r = U(R[1:])
                if 'saveexec' in mn: self.w |= {('s', 'exec')}

def need(p, c):
    n = 0
    vec = lambda S: {x for x in S if x[0] in 'va'}
    sc = lambda S: {x for x in S if x[0] == 's'}
    if p.kind == 'valu':
        if c.kind == 'mfma' and vec(p.w) & c.r: n = max(n, 2)
        if c.kind == 'mfma' and ('s', 'exec') in p.w: n = max(n, 4)
        if c.kind == 'vmem' and sc(p.w) & c.r: n = max(n, 5)
        if c.kind == 'valu':
            if c.dpp and vec(p.w) & c.r: n = max(n, 2)
            if c.dpp and ('s', 'exec') in p.w: n = max(n, 5)
            if sc(p.w) & c.r: n = max(n, 4 if 'lane' in c.mn else 2)
            if ('s', 'exec') in p.w and 'lane' in c.mn: n = max(n, 4)
            if c.mn.startswith(('v_readlane', 'v_readfirstlane')) and vec(p.w) & c.r: n = max(n, 1)
            if c.mn.startswith('v_permlane') and vec(p.w) & c.r: n = max(n, 2)
            if p.mn.startswith(TRANS) and vec(p.w) & c.r: n = max(n, 1)
            if 'op_sel' in p.text and not p.mn.startswith('v_pk') and vec(p.w) & (c.r | c.w): n = max(n, 1)
    if p.kind == 'valu' and p.mn.startswith('v_dot') and c.kind in ('valu', 'vmem', 'ds', 'mfma'):
        if c.mn == p.mn:
            if p.w & set().union(*[regs_of(o) for o in c.ops[1:3]]): n = max(n, 3)
        elif p.w & (c.r | c.w): n = max(n, 3)
    if p.kind == 'mfma':
        big = p.passes == 8
        if c.kind == 'mfma':
            if p.w & c.ab: n = max(n, 12 if big else 8)
            if p.w & c.srcc and not (p.w == c.srcc and p.passes == c.passes): n = max(n, 10 if big else 6)
        elif c.kind in ('valu', 'vmem', 'ds'):
            if p.w & (c.r | c.w): n = max(n, 12 if big else 8)
            if c.kind == 'valu' and p.srcc & c.w: n = max(n, 7 if big else 3)
    if p.kind == 'vmem' and p.sdata:
        if p.sdata & c.w: n = max(n, 2 if c.kind == 'valu' else 1)
    if p.kind == 'salu' and ('s', 'm0') in p.w and c.lds: n = max(n, 1)
    return n

class Asm:
    def __init__(self):
        self.L = []
        self.n = 0
    def __call__(self, s):
        for line in s.split('\n'):
            line = line.strip()
            if line: self.L.append(line)
    def lab(self, base='L'):
        self.n += 1
        return f'.{base}_{self.n}'
    def fix(self):
        out = []
        for t in self.L:
            c = Ins(t)
            if c.slots:
                d = 0; req = 0
                for p in reversed(out):
                    if d >= 13: break
                    if p.slots == 0: continue
                    if p.mn in ('s_branch', 's_endpgm'): break
                    req = max(req, need(p, c) - d)
                    d += p.slots
                if req > 0:
                    out.append(Ins(f's_nop {req-1}'))
            out.append(c)
        pos = {i.text.split(':')[0].strip(): k for k, i in enumerate(out) if i.label}
        for k, b in enumerate(out):
            if b.mn.startswith(('s_cbranch', 's_branch')):
                tgt = pos[b.ops[0]]
                pre = []; d = 0
                for p in reversed(out[:k + 1]):
                    if d >= 13: break
                    if p.slots == 0: continue
                    if p is not b and p.mn in ('s_branch', 's_endpgm'): break
                    pre.append((p, d)); d += p.slots
                e = 0
                for c in out[tgt:]:
                    if e >= 13: break
                    if c.slots == 0: continue
                    for p, d in pre:
                        if need(p, c) > d + e:
                            raise RuntimeError(f'hazard across branch {b.text}: {p.text} -> {c.text}')
                    if c.mn in ('s_branch', 's_endpgm'): break
                    e += c.slots
        return '\n'.join((i.text if i.label else '    ' + i.text) for i in out)

def interleave(main, fill, per=None):
    out = []
    n = len(main); m = len(fill); k = 0
    for i, x in enumerate(main):
        out.append(x)
        tgt = (m * (i + 1) + n - 1) // n if per is None else min(m, per * (i + 1))
        while k < tgt:
            out.append(fill[k]); k += 1
    out += fill[k:]
    return out
```

```python
from asmlib import *
S, D, F = 2048, 576, 4608
FL_OFF, FL_SZ = 0, 2048*128
FH, FX, FU, FZ, FE, FW = 64*128, 320*128, 576*128, 1440*128, 1536*128, 1792*128
HT_OFF, HT_SZ = FL_SZ, 6*2*64*3*1024
X1_OFF, X1_SZ = HT_OFF + HT_SZ, 288*8192
U_OFF, U_SZ = X1_OFF + X1_SZ, 6*2*144*3*1024
Z_OFF, Z_SZ = U_OFF + U_SZ, 576*4096
G_OFF, G_SZ = Z_OFF + Z_SZ, 2048*8
XB_OFF, XB_SZ = G_OFF + G_SZ, 64*16*9216
WT_OFF, WT_SZ = XB_OFF + XB_SZ, 289*8192
TS_OFF = WT_OFF + WT_SZ
LOG2E = 1.4426950408889634
PX, PWR, PWI, PW1, PB1, PW2, PB2, PG, PO, PWS = 52, 54, 56, 60, 62, 64, 66, 68, 70, 74
NTS = 10

def srd(a, d, base, size, off=0):
    if off:
        a(f's_add_u32 s{d}, s{base}, {off}')
        a(f's_addc_u32 s{d+1}, s{base+1}, 0')
    else:
        a(f's_mov_b32 s{d}, s{base}')
        a(f's_mov_b32 s{d+1}, s{base+1}')
    a(f's_mov_b32 s{d+2}, {size}')
    a(f's_mov_b32 s{d+3}, 0x20000')

def kernel_head(name):
    return f'.globl {name}\n.p2align 8\n.type {name},@function\n{name}:\n'

def kernel_desc(name, vgpr, accum, sgpr=102):
    return f'''.amdhsa_kernel {name}
  .amdhsa_next_free_vgpr {vgpr}
  .amdhsa_next_free_sgpr {sgpr}
  .amdhsa_accum_offset {accum}
  .amdhsa_group_segment_fixed_size 0
  .amdhsa_kernarg_size 96
  .amdhsa_user_sgpr_count 2
  .amdhsa_user_sgpr_kernarg_segment_ptr 1
  .amdhsa_system_sgpr_workgroup_id_x 1
  .amdhsa_float_denorm_mode_32 3
.end_amdhsa_kernel
'''

def bf16r2(a, x, y, t):
    a(f'v_cvt_pk_bf16_f32 v{t}, v{x}, v{y}')
    a(f'v_lshlrev_b32 v{x}, 16, v{t}')
    a(f'v_and_b32 v{y}, 0xffff0000, v{t}')

def bf16r1(a, x):
    a(f'v_cvt_pk_bf16_f32 v{x}, 0, v{x}')

def cos_table(a, dst_frags, step, base, st, mult, offs, dT, base_odd=None, pk=True):
    o = []
    P, C = st, st + 8
    base0 = base
    o.append(f'v_mul_f32 v{mult}, {fl(float(dT))}, v{step}')
    o.append(f'v_cos_f32 v{mult}, v{mult}')
    for T, R in ((0, P), (1, C)):
        for j in range(8):
            k = offs[j] + dT * T
            base = base_odd if (base_odd is not None and j & 1) else base0
            if k == 0:
                o.append(f'v_mov_b32 v{R+j}, v{base}')
            else:
                o.append(f'v_fmamk_f32 v{R+j}, v{step}, {fl(float(k))}, v{base}')
        for j in range(8):
            o.append(f'v_cos_f32 v{R+j}, v{R+j}')
        if T == 0:
            o.append(f'v_add_f32 v{mult}, v{mult}, v{mult}')
    for T, R in ((0, P), (1, C)):
        for j in range(4):
            o.append(f'v_cvt_pk_bf16_f32 v{dst_frags[T]+j}, v{R+2*j}, v{R+2*j+1}')
    for T in range(2, len(dst_frags)):
        for j in range(4 if pk else 0):
            o.append(f'v_pk_fma_f32 {vr(P+2*j,2)}, {vr(mult,2)}, {vr(C+2*j,2)}, {vr(P+2*j,2)} op_sel_hi:[0,1,1] neg_lo:[0,0,1] neg_hi:[0,0,1]')
        for j in range(0 if pk else 8):
            o.append(f'v_fma_f32 v{P+j}, v{mult}, v{C+j}, -v{P+j}')
        for j in range(4):
            o.append(f'v_cvt_pk_bf16_f32 v{dst_frags[T]+j}, v{P+2*j}, v{P+2*j+1}')
        P, C = C, P
    return o

def tag_load(a):
    a(f's_load_dwordx2 s[96:97], s[{PWS}:{PWS+1}], 0')
    srd(a, 8, PWS, FL_SZ)

def tag_fin(a):
    a('''
    s_mul_i32 s96, s96, 0x41c64e6d
    s_mul_i32 s97, s97, 0x2c9277b5
    s_add_u32 s96, s96, 0x3c6ef35f
    s_add_u32 s97, s97, 0x1b873593
    ''')

def flag_store(a, so, t):
    a(f'v_mov_b64 {vr(t,2)}, s[96:97]')
    a(f'buffer_store_dwordx2 {vr(t,2)}, off, s[8:11], s{so} sc1')

def count_flag(a, cnt, target, so, t):
    skip = a.lab('nf')
    a(f'''
    s_mov_b64 exec, 1
    v_mov_b32 v{t}, {cnt}
    v_mov_b32 v{t+1}, 1
    ds_add_rtn_u32 v{t+1}, v{t}, v{t+1}
    v_mov_b64 {vr(t+2,2)}, s[96:97]
    s_waitcnt lgkmcnt(0)
    v_readfirstlane_b32 s3, v{t+1}
    s_cmp_lg_u32 s3, {target if isinstance(target, str) else target-1}
    s_cbranch_scc1 {skip}
    buffer_store_dwordx2 {vr(t+2,2)}, off, s[8:11], s{so} sc1
    {skip}:
    s_mov_b64 exec, -1
    ''')

def poll(a, vo, so, t):
    lp = a.lab('poll'); got = a.lab('got')
    a(f'''
    s_mov_b32 s3, 0x40000
    {lp}:
    buffer_load_dwordx2 {vr(t,2)}, v{vo}, s[8:11], {so} offen sc1
    s_sub_u32 s3, s3, 1
    s_cbranch_scc1 {got}
    s_waitcnt vmcnt(0)
    v_cmp_ne_u64 vcc, s[96:97], {vr(t,2)}
    s_cbranch_vccnz {lp}
    {got}:
    ''')

def ts(a, opt, i):
    if opt.get('ts'):
        a(f'{"s_memtime" if opt["ts"] == 2 else "s_memrealtime"} s[{76+2*i}:{77+2*i}]')

def ts_init(a, opt):
    if opt.get('ts'):
        for i in range(NTS):
            a(f's_mov_b64 s[{76+2*i}:{77+2*i}], 0')
        ts(a, opt, 0)

def ts_flush(a, opt):
    if not opt.get('ts'): return
    a('s_waitcnt vmcnt(0)')
    ts(a, opt, NTS - 1)
    srd(a, 12, PWS, 256*8*128, TS_OFF)
    a('''
    s_lshl_b32 s3, s2, 3
    s_add_u32 s3, s3, s30
    s_lshl_b32 s3, s3, 7
    s_waitcnt lgkmcnt(0)
    s_mov_b64 exec, 1
    ''')
    for i in range(NTS):
        a(f'v_mov_b64 v[2:3], s[{76+2*i}:{77+2*i}]')
        a(f'buffer_store_dwordx2 v[2:3], off, s[12:15], s3 offset:{8*i}')
```

```python
from common import *
import math
import p2, p3

NAME = 'gated_mix__spectral_gfnet__mixer_token_mlp__prompt_kernel'
LDS = 163840
XT = 61440
KH1 = 98304
CNT1 = 57344
GA = 58368
RS = 400
OFFS = [8*(j >> 2) + (j & 3) for j in range(8)]
assert all((i*6554) >> 16 == i // 10 for i in range(640))

def pf_setup(a, sd=44, so=48):
    srd(a, sd, PW1, S * F * 2)
    a(f'''
    s_and_b32 s{so}, s2, 7
    s_mul_i32 s{so}, s{so}, 9
    s_lshr_b32 s{so}, s{so}, 1
    s_lshl_b32 s{so}, s{so}, 8
    s_lshr_b32 s3, s2, 3
    s_mul_i32 s3, s3, {64*9216}
    s_add_u32 s{so}, s{so}, s3
    ''')

def pf_addr(a, add, dst):
    a(f'''
    v_add_u32 v255, {add}, v252
    v_mul_u32_u24 v253, 6554, v255
    v_lshrrev_b32 v253, 16, v253
    v_mul_u32_u24 v254, 10, v253
    v_sub_u32 v255, v255, v254
    v_and_b32 v254, 1, v253
    v_lshrrev_b32 v253, 1, v253
    v_lshl_add_u32 v253, v254, 5, v253
    v_mul_u32_u24 v253, 9216, v253
    v_lshl_add_u32 v{dst}, v255, 7, v253
    ''')

def pf_unit(a, add, dst):
    pf_addr(a, add, 255)
    a(f'buffer_load_dword v{dst}, v255, s[44:47], s48 offen')

def dft(a, opt, L):
    a(f'''
    v_lshrrev_b32 v4, 4, v0
    v_and_b32 v5, 15, v0
    v_lshrrev_b32 v6, 3, v5
    v_mul_u32_u24 v6, 9216, v6
    v_and_b32 v7, 7, v5
    v_lshl_add_u32 v6, v7, 7, v6
    v_lshrrev_b32 v7, 1, v5
    v_xor_b32 v7, v7, v4
    v_lshl_add_u32 v6, v7, 4, v6
    v_xor_b32 v7, 64, v6
    v_add_u32 v6, {XT}, v6
    v_add_u32 v7, {XT}, v7
    ''')
    AR = 220; B = 64; ACC = 172
    def aread(T):
        return [f'ds_read_b128 {vr(AR + (T%4)*8 + rb*4, 4)}, v{6 + (T&1)} offset:{rb*18432 + (T>>1)*1024}' for rb in range(2)]
    pfpos = [int(c) for c in str(opt.get('pfpos', '999')).zfill(3)]
    first = min(min(pfpos), 1)
    def pf_at(pos):
        if pos == first:
            a('s_waitcnt lgkmcnt(0)')
            tag_load(a)
            pf_setup(a)
        for k, q in enumerate(pfpos):
            if q == pos: pf_unit(a, 192*k, 30)
        if pos == opt.get('cpos', 9):
            nc = a.lab('nc')
            a(f's_cmp_eq_u32 s30, 2\ns_cbranch_scc1 {nc}')
            pf_unit(a, opt.get('pc', 512), 30)
            a(f'{nc}:')
    a(f'''
    s_mul_i32 s3, s29, 9
    s_mul_i32 s33, s30, 3
    s_add_u32 s3, s3, s33
    s_lshl_b32 s33, s3, 3
    v_lshrrev_b32 v8, 1, v5
    v_add_u32 v8, s33, v8
    v_and_b32 v9, 1, v5
    v_cvt_f32_u32 v10, v9
    v_mul_f32 v10, {fl(0.25)}, v10
    v_lshlrev_b32 v11, 3, v4
    v_cvt_f32_u32 v11, v11
    v_lshlrev_b32 v16, 13, v8
    v_lshl_add_u32 v16, v9, 6, v16
    v_lshl_add_u32 v16, v4, 4, v16
    s_lshl_b32 s34, s28, 7
    v_and_b32 v17, 1, v8
    v_cvt_f32_u32 v17, v17
    v_fma_f32 v17, v17, -2.0, 1.0
    v_lshl_add_u32 v12, v8, 1, v9
    v_cmp_eq_u32 vcc, 1, v12
    v_mov_b32 v13, 288
    v_cndmask_b32 v13, v8, v13, vcc
    v_cndmask_b32 v14, v10, 0, vcc
    ''')
    pf_at(0)
    for i in range(3):
        if i == 0:
            a('v_cvt_f32_u32 v18, v13')
        else:
            a(f'v_add_u32 v18, {8*i}, v8')
            a('v_cvt_f32_u32 v18, v18')
        a(f'v_mul_f32 v18, {fl(1/576)}, v18')
        a(f'v_fma_f32 v19, v18, v11, v{14 if i == 0 else 10}')
        for x in cos_table(a, [B + (i*9 + T)*4 for T in range(9)], 18, 19, 32, 20, list(range(8)), 32):
            a(x)
        pf_at(i + 1)
    srd(a, 20, PWS, X1_SZ, X1_OFF)
    a('s_waitcnt lgkmcnt(0)')
    tag_fin(a)
    a('s_barrier')
    a('')
    for T in range(3):
        for x in aread(T): a(x)
    ts(a, opt, 1)
    pf_at(4)
    for T in range(18):
        if T + 3 < 18:
            for x in aread(T + 3): a(x)
        a(f's_waitcnt lgkmcnt({2*min(3, 17-T)})')
        half = T // 9
        for i in range(3):
            for rb in range(2):
                ac = ACC + ((i*2 + rb)*2 + half)*4
                c = '0' if T % 9 == 0 else vr(ac, 4)
                a(f'v_mfma_f32_16x16x32_bf16 {vr(ac,4)}, {vr(AR + (T%4)*8 + rb*4, 4)}, {vr(B + (i*9 + T%9)*4, 4)}, {c}')
    for i in range(3):
        for rb in range(2):
            ac = ACC + (i*2 + rb)*8
            for r in range(4):
                a(f'v_fma_f32 v{ac+r}, v{ac+4+r}, v17, v{ac+r}')
        for rb in range(2):
            ac = ACC + (i*2 + rb)*8
            for p in range(2):
                a(f'v_cvt_pk_bf16_f32 v{140 + i*4 + rb*2 + p}, v{ac+2*p}, v{ac+2*p+1}')
        a(f'buffer_store_dwordx4 {vr(140 + i*4, 4)}, v16, s[20:23], s34 offen sc1')
        if i < 2: a('s_add_u32 s34, s34, 65536')
    pf_at(5)

def helper(a, opt, L):
    a(f'''
    s_and_b32 s31, s2, 3
    s_bfe_u32 s32, s2, 0x10002
    s_bfe_u32 s33, s2, 0x20005
    s_bfe_u32 s34, s2, 0x10007
    v_lshlrev_b32 v6, 4, v0
    v_add_u32 v7, 1024, v6
    v_subrev_u32 v8, 128, v6
    v_cmp_gt_u32 vcc, 8, v0
    v_cndmask_b32 v7, v8, v7, vcc
    v_and_b32 v2, 7, v0
    v_lshrrev_b32 v3, 3, v0
    v_mul_u32_u24 v4, 578, v2
    v_mul_u32_u24 v5, 18, v3
    v_add_u32 v4, v4, v5
    v_mul_u32_u24 v5, {9*8192}, v3
    v_lshl_add_u32 v5, v2, 4, v5
    s_lshl_b32 s35, s33, 2
    s_add_u32 s35, s35, s32
    s_lshl_b32 s35, s35, 4
    s_add_u32 s35, s35, s31
    s_mul_i32 s35, s35, {8*578}
    s_mul_i32 s3, s29, 144
    s_add_u32 s35, s35, s3
    s_lshl_b32 s36, s33, 1
    s_add_u32 s36, s36, s34
    s_lshl_b32 s36, s36, 1
    s_add_u32 s36, s36, s32
    s_lshl_b32 s36, s36, 2
    s_add_u32 s36, s36, s31
    s_lshl_b32 s36, s36, 7
    s_mul_i32 s3, s29, {72*8192}
    s_add_u32 s36, s36, s3
    v_mov_b32 v8, {CNT1}
    v_mov_b64 v[12:13], 0
    v_mov_b64 v[14:15], 0
    s_mov_b32 m0, {GA}
    s_cmp_eq_u32 s34, 0
    s_waitcnt lgkmcnt(0)
    s_cselect_b32 s12, s{PWR}, s{PWI}
    s_cselect_b32 s13, s{PWR+1}, s{PWI+1}
    s_mov_b32 s14, {S*289*2}
    s_mov_b32 s15, 0x20000
    ''')
    srd(a, 16, PG, D * 2)
    a(f'''
    buffer_load_dwordx4 v6, s[16:19], 0 offen lds
    s_mov_b32 m0, {GA + 1024}
    ds_write_b128 v8, v[12:15]
    buffer_load_dwordx4 v7, s[16:19], 0 offen lds
    ''')
    tag_load(a)
    WR, WT = 160, 208
    n = 0
    if opt.get('cpf'):
        a(f'''
        s_getpc_b64 s[16:17]
        .Lcpf:
        s_sub_u32 s16, s16, .Lcpf-{NAME}
        s_subb_u32 s17, s17, 0
        s_mov_b32 s18, .Lkend-{NAME}
        s_bfe_u32 s3, s2, 0x30003
        s_lshl_b32 s3, s3, 13
        v_lshlrev_b32 v9, 7, v0
        v_add_u32 v9, s3, v9
        buffer_load_dword v30, v9, s[16:19], 0 offen
        '''); n += 1
    for jj in range(8):
        a(f'buffer_load_dwordx4 {vr(WR + 6*jj, 4)}, v4, s[12:15], s35 offen')
        a(f'buffer_load_dword v{WR + 6*jj + 4}, v4, s[12:15], s35 offen offset:16')
        if jj < 7: a(f's_add_u32 s35, s35, {32*578*(OFFS[jj+1] - OFFS[jj])}')
    pf_setup(a)
    hp = opt.get('hpf', 9)
    if hp == 0: pf_unit(a, 576 - 192, 30)
    srd(a, 16, PWS, WT_SZ, WT_OFF)
    a(f'''
    s_mov_b32 s40, 0x05040100
    s_mov_b32 s41, 0x07060302
    s_waitcnt vmcnt({16 + n + (hp == 0)}) lgkmcnt(0)
    ''')
    tag_fin(a)
    a('s_barrier')
    ts(a, opt, 1)
    if hp == 1: pf_unit(a, 576 - 192, 30)
    a(f's_waitcnt vmcnt({int(hp < 2)})')
    ts(a, opt, 1)
    if hp == 2: pf_unit(a, 576 - 192, 30)
    for c in range(10):
        if c == 9:
            a(f's_cmp_lg_u32 s29, 3\ns_cbranch_scc1 {L["p1c"]}\ns_mov_b32 exec_lo, 0\ns_mov_b32 exec_hi, 0xff000000')
        for p in range(4):
            a(f'v_perm_b32 v{WT + 4*c + p}, v{WR + 6*(2*p+1) + (c>>1)}, v{WR + 6*(2*p) + (c>>1)}, s{40 + (c&1)}')
        a(f'buffer_store_dwordx4 {vr(WT + 4*c, 4)}, v5, s[16:19], s36 offen sc1')
        a('s_add_u32 s36, s36, 8192')
    a('s_mov_b64 exec, -1')
    a(f's_branch {L["p1c"]}')

def ln(a, opt, L):
    DW = opt.get('dw', 7)
    X = 64; AD = 100; AC = 110; H = 116; HP = 140; TR = 152; GW = 164
    a(f'''
    s_setprio 3
    s_and_b32 s36, s30, 1
    s_bfe_u32 s37, s30, 0x10001
    v_lshrrev_b32 v1, 3, v0
    v_and_b32 v3, 7, v0
    v_mul_u32_u24 v2, 73728, v1
    v_lshl_add_u32 v2, v3, 4, v2
    s_lshl_b32 s31, s36, 1
    s_or_b32 s31, s31, s37
    s_lshl_b32 s3, s31, 9
    s_add_u32 s3, s3, s28
    s_mul_i32 s32, s3, 1152
    s_lshl_b32 s38, s29, 8
    ''')
    for i in range(1, 9):
        a(f's_add_u32 s{38+i}, s{37+i}, 128')
        if i >= 3:
            a(f's_cmp_eq_u32 s{38+i}, 1152')
            a(f's_cselect_b32 s{38+i}, 0, s{38+i}')
    a('v_add_u32 v2, s32, v2')
    a('s_waitcnt lgkmcnt(0)')
    srd(a, 12, PX, S * D * 2)
    for i in range(9):
        a(f'buffer_load_dwordx4 {vr(X + 4*i, 4)}, v2, s[12:15], s{38+i} offen' + (' nt' if opt.get('xnt') else ''))
    tag_load(a)
    pa = opt.get('pa', 128); upos = [int(c) for c in str(opt.get('upos', '23')).zfill(2)]
    pf_setup(a, 16, 7)
    def unit(pos):
        n = 0
        for k in range(2):
            if pos == 0: pf_addr(a, pa - 256 + 256*k, 36 + k)
            ld = f'buffer_load_dword v39, v{36 + k}, s[16:19], s7 offen'
            if upos[k] == pos: a(ld); n += 1
            if pos == 2 and 2 < upos[k] < 9:
                nf = a.lab('nf')
                a(f's_cmp_ge_u32 s2, 40\ns_cbranch_scc1 {nf}\n{ld}\n{nf}:')
        return n
    n0 = unit(0)
    a(f'''
    v_lshrrev_b32 v4, 4, v0
    v_and_b32 v5, 15, v0
    v_xor_b32 v6, v3, v4
    s_lshl_b32 s3, s36, 2
    v_xor_b32 v6, s3, v6
    v_lshlrev_b32 v6, 1, v6
    v_lshl_add_u32 v6, v1, 4, v6
    s_and_b32 s35, s30, 3
    s_mul_i32 s3, s35, {9216 // 8}
    s_add_u32 s3, s3, {XT // 8}
    v_add_u32 v6, s3, v6
    ''')
    for i in range(9):
        a(f'v_add_lshl_u32 v{AD+i}, v6, s{38+i}, 3')
    a(f'''
    s_mul_i32 s44, s37, {KH1}
    s_lshl_b32 s3, s36, 12
    s_add_u32 s44, s44, s3
    s_add_u32 s45, s44, {8192*(DW - 1)}
    s_cmp_lt_u32 s2, 40
    s_cselect_b32 s45, s44, s45
    s_cselect_b32 s44, 16384, s44
    s_cselect_b32 s39, 0, 8192
    v_mul_u32_u24 v109, {RS}, v1
    v_lshl_add_u32 v109, v3, 4, v109
    v_add_u32 v109, s45, v109
    v_lshrrev_b32 v6, 2, v5
    v_mul_u32_u24 v114, {RS}, v6
    v_and_b32 v6, 3, v5
    v_mul_u32_u24 v6, 24, v6
    v_mul_u32_u24 v7, 96, v4
    v_add3_u32 v114, v114, v6, v7
    s_lshl_b32 s3, s29, 5
    s_add_u32 s3, s3, s45
    v_add_u32 v114, s3, v114
    v_mul_u32_u24 v115, {64*3072}, v4
    v_lshl_add_u32 v115, v5, 4, v115
    s_mul_i32 s48, s29, {3*64*3072}
    s_mul_i32 s3, s28, 3072
    s_add_u32 s48, s48, s3
    s_lshl_b32 s3, s35, 8
    s_add_u32 s48, s48, s3
    v_lshlrev_b32 v200, 4, v3
    s_lshl_b32 s3, s29, 8
    s_add_u32 s3, s3, {GA}
    v_add_u32 v200, s3, v200
    v_lshlrev_b32 v201, 3, v1
    s_lshl_b32 s49, s28, 8
    s_lshl_b32 s3, s31, 6
    s_add_u32 s49, s49, s3
    v_mov_b64 v[{AC}:{AC+1}], 0
    v_mov_b64 v[{AC+2}:{AC+3}], 0
    s_mov_b32 s47, 0x3f803f80
    ''')
    srd(a, 20, PWS, HT_SZ, HT_OFF)
    srd(a, 24, PWS, G_SZ, G_OFF)
    p2.loader_setup(a, opt)
    pieces = [x for k in range(DW) for x in p2.dma_pieces(opt)]
    e0, e1, e2 = opt.get('e0', 8), opt.get('e1', 1), opt.get('e2', 2)
    cnt = [0]
    def pre(n, lim=4*(DW - 1)):
        while n > 0 and cnt[0] < lim:
            for x in pieces[cnt[0]]: a(x)
            cnt[0] += 1; n -= 1
    pre(e0)
    for i in range(9):
        a(f's_waitcnt vmcnt({8 - i + cnt[0] + n0})')
        if i == 0: ts(a, opt, 1)
        a(f'ds_write_b128 v{AD+i}, {vr(X + 4*i, 4)}')
        pre(e1)
        for k in range(4):
            a(f'v_dot2c_f32_bf16 v{AC + (k&1)}, s47, v{X + 4*i + k}')
            a(f'v_dot2c_f32_bf16 v{AC + 2 + (k&1)}, v{X + 4*i + k}, v{X + 4*i + k}')
        if i < 3:
            for k in range(4):
                a(f'v_lshlrev_b32 v{H + 8*i + 2*k}, 16, v{X + 4*i + k}')
                a(f'v_and_b32 v{H + 8*i + 2*k + 1}, 0xffff0000, v{X + 4*i + k}')
    bpos = opt.get('bpos', 1)
    def bar():
        a('s_waitcnt lgkmcnt(0)')
        a('s_barrier')
    if bpos == 0: bar()
    M, V = AC, AC + 2
    a(f'v_add_f32 v{M}, v{M}, v{M+1}')
    a(f'v_add_f32 v{V}, v{V}, v{V+1}')
    def red(regs):
        for d in ('quad_perm:[1,0,3,2]', 'quad_perm:[2,3,0,1]', 'row_half_mirror'):
            for r in regs: a(f'v_add_f32_dpp v{r}, v{r}, v{r} {d} row_mask:0xf bank_mask:0xf')
    red([M, V])
    a(f'''
    v_mul_f32 v{M}, {fl(1/576)}, v{M}
    v_mul_f32 v{V}, {fl(1/576)}, v{V}
    v_fma_f32 v{V}, -v{M}, v{M}, v{V}
    v_max_f32 v{V}, 0, v{V}
    ''')
    bf16r1(a, V); bf16r1(a, M)
    a(f'v_add_f32 v{V}, {fl(1e-5)}, v{V}')
    bf16r1(a, V)
    a(f'v_sqrt_f32 v{V}, v{V}')
    bf16r1(a, V)
    a(f'v_rcp_f32 v{V}, v{V}')
    if bpos == 1: bar()
    a(f'v_mul_f32 v{M}, -v{M}, v{V}')
    for i in range(3):
        for k in range(8):
            a(f'v_fma_f32 v{H + 8*i + k}, v{H + 8*i + k}, v{V}, v{M}')
        for k in range(4):
            a(f'v_cvt_pk_bf16_f32 v{HP + 4*i + k}, v{H + 8*i + 2*k}, v{H + 8*i + 2*k + 1}')
        a(f'ds_write_b128 v109, {vr(HP + 4*i, 4)} offset:{128*i}')
        pre(e2)
    a('s_waitcnt lgkmcnt(0)')
    for i in range(3):
        for rd in range(2):
            a(f'ds_read_b64_tr_b16 {vr(TR + 4*i + 2*rd, 2)}, v114 offset:{8*i + rd*4*RS}')
    tag_fin(a)
    if bpos == 2: a('s_barrier')
    a('s_mov_b32 exec_hi, 0xffff')
    for i in range(3):
        a(f's_waitcnt lgkmcnt({4 - 2*i})')
        a(f'buffer_store_dwordx4 {vr(TR + 4*i, 4)}, v115, s[20:23], s48 offen offset:{1024*i} sc1')
    a('s_mov_b32 exec_hi, -1')
    ts(a, opt, 2)
    c0 = cnt[0]
    pre(opt.get('e3', 99), 4*DW)
    n1 = unit(1)
    a(f's_waitcnt vmcnt({cnt[0] - c0 + n1})')
    ts(a, opt, 3)
    count_flag(a, CNT1, 4, 50, 32)
    a('s_setprio 0')
    ng = a.lab('ng'); ng2 = a.lab('ng'); tb = a.lab('tb'); sa = a.lab('sa'); sb = a.lab('sb')
    a(f's_cmp_lg_u32 s35, s29\ns_cbranch_scc1 {ng}')
    for i in range(9):
        a(f'ds_read_b128 {vr(GW + 4*i, 4)}, v200 offset:{128*i}')
    a(f'v_mov_b64 v[{AC}:{AC+1}], 0')
    for i in range(9):
        a(f's_waitcnt lgkmcnt({8-i})')
        for k in range(4):
            a(f'v_dot2c_f32_bf16 v{AC + (k&1)}, v{GW + 4*i + k}, v{X + 4*i + k}')
    a(f'v_add_f32 v{M}, v{M}, v{M+1}')
    red([M])
    bf16r1(a, M)
    a(f'''
    v_mul_f32 v{M}, {fl(-LOG2E)}, v{M}
    v_exp_f32 v{M}, v{M}
    v_add_f32 v{M}, 1.0, v{M}
    v_rcp_f32 v{M}, v{M}
    ''')
    bf16r1(a, M)
    a(f'v_sub_f32 v{M+1}, 1.0, v{M}')
    bf16r1(a, M+1)
    a(f'''
    v_mul_f32 v{M}, {fl(2.0/(S*D))}, v{M}
    s_mov_b32 exec_lo, 0x01010101
    s_mov_b32 exec_hi, 0x01010101
    buffer_store_dwordx2 v[{M}:{M+1}], v201, s[24:27], s49 offen sc1
    s_mov_b64 exec, -1
    {ng}:
    ''')
    c0 = cnt[0]
    pre(99, 4*DW)
    a(f's_cmp_lg_u32 s35, s29\ns_cbranch_scc1 {ng2}\ns_waitcnt vmcnt({cnt[0] - c0})')
    count_flag(a, 's98', 's99', 51, 32)
    a(f'{ng2}:')
    unit(2)
    ts(a, opt, 4)
    a(f'''
    s_cmp_lt_u32 s2, 40
    s_cbranch_scc1 {L["fft"]}
    {L["tabs"]}:
    ''')
    gl = p3.tables(a, opt)
    nA, nB = opt.get('na', 150), opt.get('nb', 250)
    a(f's_cmp_eq_u32 s30, 7\ns_cbranch_scc1 {sa}')
    for x in gl[:nA]: a(x)
    a(f'{sa}:')
    a(f's_cmp_lt_u32 s2, 40\ns_cbranch_scc1 {tb}')
    unit(3)
    if 'spf' in opt:
        p2.spf_setup(a, opt)
        for k in range(min(DW, 3)):
            for x in p2.spf_row(): a(x)
    a(f'{tb}:')
    a(f's_cmp_eq_u32 s30, 7\ns_cbranch_scc1 {sb}')
    for x in gl[nA:nA+nB]: a(x)
    a(f'{sb}:')
    a(f's_cmp_lt_u32 s2, 40\ns_cbranch_scc1 {L["seam"]}')
    if 'spf' in opt:
        for k in range(DW - 3):
            for x in p2.spf_row(): a(x)
    p2.loader_loop(a, opt)
    a(f'{L["seam"]}:')
    p3.loaders(a, opt, gl[nA+nB:])

def gen(opt):
    a = Asm()
    L = {k: a.lab(k) for k in ('end', 'ln', 'hlp', 'p1c', 'fft', 'tabs', 'seam', 'c2')}
    a(f'''
    s_cmp_ge_u32 s2, 256
    s_cbranch_scc1 {L["end"]}
    s_load_dwordx16 s[52:67], s[0:1], 0
    s_load_dwordx8 s[68:75], s[0:1], 64
    ''')
    ts_init(a, opt)
    a(f'''
    v_mov_b32 v252, v0
    v_lshrrev_b32 v1, 6, v0
    v_and_b32 v0, 63, v0
    v_readfirstlane_b32 s30, v1
    s_and_b32 s28, s2, 7
    s_lshr_b32 s3, s2, 5
    s_lshl_b32 s3, s3, 3
    s_add_u32 s28, s28, s3
    s_bfe_u32 s29, s2, 0x20003
    s_lshl_b32 s3, s29, 6
    s_add_u32 s3, s3, s28
    s_lshl_b32 s3, s3, 7
    s_add_u32 s50, s3, {FH}
    s_cmp_lt_u32 s30, 3
    s_cselect_b32 s51, 0, {FW - FX}
    s_cselect_b32 s98, 4, 8
    s_cselect_b32 s99, 2, 1
    s_add_u32 s51, s51, s3
    s_add_u32 s51, s51, {FX}
    s_add_u32 s98, s98, {CNT1}
    s_cmp_lt_u32 s30, 4
    s_cbranch_scc1 {L["hlp"]}
    ''')
    ln(a, opt, L)
    dl = a.lab('dft')
    a(f'''
    {L["hlp"]}:
    s_cmp_lg_u32 s30, 3
    s_cbranch_scc1 {dl}
    ''')
    helper(a, opt, L)
    a(f'{dl}:')
    dft(a, opt, L)
    a(f'''
    {L["p1c"]}:
    s_cmp_lt_u32 s2, 40
    s_cbranch_scc1 {L["fft"]}
    ''')
    p2.consumer(a, opt, KH1)
    a(f'{L["c2"]}:')
    p3.consumer(a, opt)
    a(f'{L["fft"]}:')
    p2.fft(a, opt, L)
    a(f'{L["end"]}:')
    a('s_endpgm')
    a('.Lkend:')
    launch = f'; @launch {"kernel=" + NAME + " " if opt.get("list") else ""}grid=(256,1,1) block=(512,1,1) lds={LDS}'
    body = a.fix()
    if opt.get('snt'): body = '\n'.join(l + ' nt' if 'buffer_store_dwordx4' in l and l.endswith('sc1') else l for l in body.split('\n'))
    return kernel_head(NAME) + body + '\n', kernel_desc(NAME, 256, 256), launch
```

```python
from common import *
import math
assert all((n*171) >> 10 == n // 6 for n in range(216))
assert all((g*11) >> 5 == g // 3 for g in range(12))

def tile(a):
    a('''
    s_and_b32 s3, s2, 7
    s_mul_i32 s3, s3, 27
    s_lshr_b32 s33, s2, 3
    s_add_u32 s33, s33, s3
    s_sub_u32 s33, s33, 5
    s_mul_i32 s34, s33, 171
    s_lshr_b32 s34, s34, 10
    s_mul_i32 s3, s34, 6
    s_sub_u32 s33, s33, s3
    ''')

POSD = {32: [0, 11, 21, 5, 16, 27], 16: [0, 5, 11, 3, 8, 13], 8: [0, 3, 5, 1, 4, 7]}
def rot(a, opt, d):
    if not opt.get('rot', 1):
        a(f's_mov_b32 s{d}, 0'); return
    WD = opt.get('wd', 16)
    a(f'''
    s_mul_i32 s{d}, s33, 5
    s_lshr_b32 s{d}, {sum(p << 5*i for i, p in enumerate(POSD[WD])) * opt.get('rd', 1)}, s{d}
    s_mul_i32 s3, s34, {opt.get('rf', WD // 4)}
    s_add_u32 s{d}, s{d}, s3
    s_and_b32 s{d}, s{d}, {WD - 1}
    ''')

def loader_setup(a, opt):
    tile(a)
    a(f'''
    v_lshrrev_b32 v2, 1, v5
    v_xor_b32 v2, v2, v4
    v_lshlrev_b32 v2, 5, v2
    v_and_b32 v3, 1, v5
    v_lshl_add_u32 v2, v3, 4, v2
    v_mul_u32_u24 v3, {64*9216}, v4
    v_add_u32 v2, v2, v3
    v_xor_b32 v3, 128, v2
    v_add_u32 v38, {64*8*9216 - 2048}, v2
    v_add_u32 v1, {64*24*9216 - 3072}, v3
    v_add_u32 v3, {64*16*9216 - 1024}, v3
    s_lshl_b32 s3, s36, 8
    s_lshl_b32 s38, s37, 5
    s_add_u32 s3, s3, s38
    s_mul_i32 s41, s3, 9216
    s_lshl_b32 s3, s34, 8
    s_add_u32 s41, s41, s3
    s_add_u32 s42, s41, {opt.get('wd', 16)*9216}
    s_mov_b32 s45, 0
    s_mov_b32 s43, 0
    ''')
    rot(a, opt, 40)
    a('s_mul_i32 s40, s40, 9216\ns_add_u32 s40, s40, s41')
    srd(a, 12, PW1, 0 if opt.get('now1') else S * F * 2)
    a('s_cmp_lt_u32 s2, 40\ns_cselect_b32 s14, 0, s14')

def dma_pieces(opt):
    ld = [f'buffer_load_dwordx4 v{(2, 3, 38, 1)[g]}, s[12:15], s40 offen offset:{g*1024} lds' for g in range(4)]
    WD = opt.get('wd', 16)
    return [['s_add_u32 m0, s44, s45', 's_add_u32 s45, s45, s39', ld[0], 's_and_b32 s45, s45, 0xffff'], [ld[1], 's_add_u32 s43, s43, 1'],
            [ld[2], f's_and_b32 s38, s43, {WD - 1}', f's_cselect_b32 s38, 0, {WD*9216}'],
            [ld[3], 's_add_u32 s40, s40, 9216', 's_cmp_eq_u32 s40, s42', 's_cselect_b32 s40, s41, s40'] + [f's_add_u32 s{r}, s{r}, s38' for r in (40, 41, 42)]]

def dma(a, opt):
    for p_ in dma_pieces(opt):
        for x in p_: a(x)

def loader_loop(a, opt):
    DW = opt.get('dw', 7); LW = opt.get('lw1', DW)
    for i in range(DW - LW + 1):
        a(f's_waitcnt vmcnt({4*(DW - 1 - i)})')
        a('s_barrier')
    loop = a.lab('g1lloop')
    a(f'''
    s_mov_b32 s46, {32 - DW}
    {loop}:
    s_waitcnt vmcnt({4*(LW - 2)})
    s_barrier
    ''')
    dma(a, opt)
    if 'spf' in opt:
        for x in spf_row(): a(x)
    a(f'''
    s_sub_u32 s46, s46, 1
    s_cmp_lg_u32 s46, 0
    s_cbranch_scc1 {loop}
    ''')

def gelu_pairs(a, regs, t):
    n = len(regs)
    for k, r in enumerate(regs): a(f'v_pk_mul_f32 {vr(t+2*k,2)}, {vr(r,2)}, {vr(r,2)}')
    for k, r in enumerate(regs): a(f'v_pk_fma_f32 {vr(t+2*k,2)}, {vr(t+2*k,2)}, s[44:45], {vr(14,2)}')
    for k, r in enumerate(regs): a(f'v_pk_mul_f32 {vr(t+2*k,2)}, {vr(t+2*k,2)}, {vr(r,2)}')
    for k in range(2*n): a(f'v_exp_f32 v{t+k}, v{t+k}')
    for k, r in enumerate(regs): a(f'v_pk_add_f32 {vr(t+2*k,2)}, {vr(t+2*k,2)}, 1.0 op_sel_hi:[1,0]')
    for k in range(2*n): a(f'v_rcp_f32 v{t+k}, v{t+k}')
    for k, r in enumerate(regs): a(f'v_pk_mul_f32 {vr(r,2)}, {vr(t+2*k,2)}, {vr(r,2)}')

def consumer(a, opt, KH1):
    ACC = 32; Q = 128; P = 160; TA = 16; BI = 24
    DP = opt.get('dp', 6); WD = opt.get('wd', 16)
    hsc = (' sc1' if opt.get('hsc', 1) else '') + (' nt' if opt.get('hnt') else '')
    tile(a)
    k0 = -2 * math.sqrt(2 / math.pi) * LOG2E
    a(f'''
    s_and_b32 s36, s30, 1
    s_lshr_b32 s37, s30, 1
    v_and_b32 v5, 15, v0
    v_lshrrev_b32 v4, 4, v0
    s_lshl_b32 s3, s33, 1
    s_add_u32 s38, s3, s36
    s_mul_i32 s39, s38, {64*3072}
    s_mul_i32 s3, s37, {32*3072}
    s_add_u32 s48, s39, s3
    s_add_u32 s49, s48, {WD*3072}
    v_lshlrev_b32 v1, 4, v0
    v_lshrrev_b32 v6, 2, v5
    v_lshl_add_u32 v6, v4, 2, v6
    v_and_b32 v7, 7, v6
    s_lshl_b32 s3, s37, 2
    s_xor_b32 s3, s3, 4
    v_xor_b32 v7, s3, v7
    v_lshlrev_b32 v6, 8, v6
    v_lshl_add_u32 v6, v7, 5, v6
    v_and_b32 v7, 3, v5
    v_lshl_add_u32 v6, v7, 3, v6
    s_mul_i32 s3, s37, {KH1}
    v_add_u32 v{TA}, s3, v6
    ''')
    rot(a, opt, 39)
    a('s_mul_i32 s39, s39, 3072\ns_add_u32 s39, s39, s48')
    adv = ['s_add_u32 s39, s39, 3072', 's_cmp_eq_u32 s39, s49', 's_cselect_b32 s39, s48, s39']
    for lb in range(1, 8):
        a(f'v_xor_b32 v{TA+lb}, {lb*32}, v{TA}')
    for k in range(48):
        a(f'v_mov_b64 {vr(ACC + 2*k, 2)}, 0')
    srd(a, 12, PWS, 0 if opt.get('noh') else HT_SZ, HT_OFF)
    srd(a, 20, PWS, U_SZ, U_OFF)
    srd(a, 16, PB1, F * 2)
    a(f'''
    s_mov_b32 s41, 3
    s_lshl_b32 s28, s34, 1
    s_add_u32 s28, s28, s37
    s_mul_i32 s47, s38, 72
    s_add_u32 s47, s47, s28
    s_lshl_b32 s47, s47, 7
    s_add_u32 s47, s47, {FU}
    s_lshl_b32 s28, s28, 1
    s_lshl_b32 s40, s28, 6
    v_lshlrev_b32 v8, 3, v4
    s_mul_i32 s3, s30, 12288
    v_add_u32 v2, s3, v1
    s_xor_b32 s3, s30, 2
    s_mul_i32 s3, s3, 12288
    v_add_u32 v3, s3, v1
    s_mov_b32 s44, {fl(k0 * 0.044715)}
    s_mov_b32 s45, {fl(k0 * 0.044715)}
    v_mov_b32 v14, {fl(k0)}
    v_mov_b32 v15, {fl(k0)}
    s_mul_i32 s42, s38, {144*3072}
    s_mul_i32 s3, s28, 3072
    s_add_u32 s42, s42, s3
    s_mul_i32 s46, s38, 11
    s_lshr_b32 s46, s46, 5
    s_lshl_b32 s46, s46, 1
    s_add_u32 s46, s46, s37
    s_lshl_b32 s46, s46, 12
    s_add_u32 s46, s46, {FH}
    v_and_b32 v9, 31, v0
    v_lshlrev_b32 v9, 7, v9
    s_waitcnt vmcnt(0)
    ''')
    count_flag(a, 's98', 's99', 51, 10)
    ts(a, opt, 2)
    poll(a, 9, 's46', 10)
    ts(a, opt, 3)
    def pload(slot):
        return [f'buffer_load_dwordx4 {vr(P + slot*12 + i*4, 4)}, v1, s[12:15], s39 offen offset:{i*1024}{hsc}' for i in range(3)]
    for st in range(DP):
        for x in pload(st) + adv: a(x)
    def tr(slot, lb):
        return [f'ds_read_b64_tr_b16 {vr(Q + lb*4 + 2*rd, 2)}, v{TA+lb} offset:{slot*8192 + rd*4096}' for rd in range(2)]
    a('s_barrier')
    for lb in range(7):
        for x in tr(0, lb): a(x)
    if opt.get('ts'):
        a(f's_waitcnt vmcnt({3*DP - 3})')
        ts(a, opt, 4)
    plat = [int(c) for c in str(opt.get('plat', '135')).zfill(3)]
    BST = 5
    def body(last):
        q = [k for k in range(DP) for _ in range(3)]
        for st in range(8):
            q = q[max([k + 1 for k, x in enumerate(q) if x <= st], default=0):]
            a(f's_waitcnt vmcnt({len(q)})')
            a('s_barrier')
            ld = not (last and st + DP >= 8)
            pl = pload((st + DP) % 8)
            fin = last and st == 7
            for lb in range(8):
                w = 12 if not fin else (12 if lb == 0 else 2*(7 - lb) + 3*max(0, min(lb - 2, 4)))
                a(f's_waitcnt lgkmcnt({min(w, 15)})')
                t_ = tr(st, 7) if lb == 0 else tr((st + 1) % 8, lb - 1)
                for i in range(3):
                    ac = vr(ACC + lb*12 + i*4, 4)
                    a(f'v_mfma_f32_16x16x32_bf16 {ac}, {vr(Q + lb*4, 4)}, {vr(P + st*12 + i*4, 4)}, {ac}')
                    if i < 2 and not (fin and lb > 0): a(t_[i])
                    if fin and 2 <= lb < 6:
                        k = (lb - 2)*3 + i
                        a(f'ds_write_b128 v2, {vr(ACC + 4*k, 4)} offset:{k*1024}')
                    if last and st == 0 and i == 2 and lb == 0:
                        for b_ in range(4):
                            a(f'buffer_load_dwordx2 {vr(BI + 2*b_, 2)}, v8, s[16:19], s40 offen offset:{32*b_}'); q.append(BST)
                    if i == 2 and ld:
                        for k in range(3):
                            if plat[k] == lb: a(pl[k]); q.append(st + DP)
                        if WD < 32 and st + DP == 8 and lb == 0:
                            for r in (39, 48, 49): a(f's_add_u32 s{r}, s{r}, {"s43" if WD == 16 else WD*3072}')
                        if WD == 16 and st + DP == 7 and lb == 4: a(f's_cmp_eq_u32 s41, 2\ns_cselect_b32 s43, {WD*3072}, 0')
                        if lb == 6: a(adv[0])
                        if lb == 7: a(adv[1]); a(adv[2])
                    if last and st == BST and lb < 4:
                        if i == 0:
                            a(f'v_lshlrev_b32 v10, 16, v{BI+2*lb}')
                            a(f'v_and_b32 v11, 0xffff0000, v{BI+2*lb}')
                            a(f'v_lshlrev_b32 v12, 16, v{BI+2*lb+1}')
                            a(f'v_and_b32 v13, 0xffff0000, v{BI+2*lb+1}')
                        else:
                            for k in range(3*i - 3, 3*i):
                                r = ACC + (lb + 4)*12 + 2*k
                                a(f'v_pk_add_f32 {vr(r,2)}, {vr(r,2)}, {vr(10 + 2*(k & 1), 2)}')
    loop = a.lab('g1loop')
    a(f'{loop}:')
    body(False)
    if opt.get('tsl') == 1:
        a('s_mov_b64 s[78:79], s[80:81]\ns_mov_b64 s[80:81], s[82:83]')
        ts(a, opt, 3)
    a(f'''
    s_sub_u32 s41, s41, 1
    s_cmp_lg_u32 s41, 0
    s_cbranch_scc1 {loop}
    ''')
    body(True)
    ts(a, opt, 5)
    a('s_waitcnt lgkmcnt(0)')
    a('s_barrier')
    a('s_setprio 2')
    RX = 160
    order = [(2*p + hb)*3 + i for p in range(2) for i in range(3) for hb in range(2)]
    for k in order:
        a(f'ds_read_b128 {vr(RX + 4*k, 4)}, v3 offset:{k*1024}')
    for n_, (p, i) in enumerate([(p, i) for p in range(2) for i in range(3)]):
        if n_ == 0: a('s_waitcnt lgkmcnt(10)')
        if n_ == 1: a('s_waitcnt lgkmcnt(0)\ns_barrier')
        regs = []
        for hb in range(2):
            k = (2*p + hb)*3 + i
            for q in range(2):
                r = ACC + 48 + 4*k + 2*q
                a(f'v_pk_add_f32 {vr(r,2)}, {vr(r,2)}, {vr(RX + 4*k + 2*q, 2)}')
                regs.append(r)
        gelu_pairs(a, regs, 16)
        o = 128 + 4*n_
        for q, r in enumerate(regs):
            a(f'v_cvt_pk_bf16_f32 v{o+q}, v{r}, v{r+1}')
        a(f'buffer_store_dwordx4 {vr(o,4)}, v1, s[20:23], s42 offen offset:{i*1024} sc1')
        if n_ == 2: a('s_add_u32 s42, s42, 3072')
    a('s_setprio 0')
    a('s_mov_b64 exec, 1')
    a('s_waitcnt vmcnt(0)')
    flag_store(a, 47, 10)
    a('s_mov_b64 exec, -1')
    ts(a, opt, 6)

XR, XI, XN = 16, 32, 48
RE, IM = 64, 96
C64, S64, C32, S32 = 128, 160, 192, 200
TMP = 208
TB = 110592
L_TW, L_F64, L_F32 = 0, 32768, 49152
OFFS = [8*(j >> 2) + (j & 3) for j in range(8)]

def mf(a, d, x, y, first):
    a(f'v_mfma_f32_32x32x16_bf16 {vr(d,16)}, {vr(x,4)}, {vr(y,4)}, {"0" if first else vr(d,16)}')

def cmul(a, b, fwd, negsrc, tw, k0=0, n=8):
    T0 = TMP + 32
    for k in range(k0, k0 + n):
        re = vr(RE + 16*b + 2*k, 2); im = vr(IM + 16*b + 2*k, 2)
        c = vr(tw + 2*k, 2); s = vr(tw + 16 + 2*k, 2); t = vr(T0 + 2*k, 2)
        a(f'v_pk_mul_f32 {t}, {re}, {c}')
        a(f'v_pk_mul_f32 {c}, {im}, {c}')
        ng = ' neg_lo:[1,0,0] neg_hi:[1,0,0]'
        a(f'v_pk_fma_f32 {t}, {im}, {s}, {t}' + ('' if fwd else ng))
        a(f'v_pk_fma_f32 {c}, {re}, {s}, {c}' + (ng if fwd else ''))
    for k in range(k0, k0 + n):
        t = T0 + 2*k; c = tw + 2*k
        a(f'v_cvt_pk_bf16_f32 v{XR + 8*b + k}, v{t}, v{t+1}')
        a(f'v_cvt_pk_bf16_f32 v{XI + 8*b + k}, v{c}, v{c+1}')
        q = t if negsrc == 'r' else c
        a(f'v_cvt_pk_bf16_f32 v{XN + 8*b + k}, -v{q}, -v{q+1}')

def twread(a, d, b):
    for cs in range(2):
        for r4 in range(4):
            a(f'ds_read_b128 {vr(TMP + 16*cs + 4*r4, 4)}, v2 offset:{L_TW + ((d*2 + b)*2 + cs)*4096 + r4*1024}')

def w2pf_setup(a, sd, sj, so, vo):
    srd(a, sd, PW2, F * S * 2)
    w2base(a, so)
    a(f'''
    v_lshrrev_b32 v{vo}, 1, v0
    v_mul_u32_u24 v{vo}, {4096 - 2*128}, v{vo}
    v_lshl_add_u32 v{vo}, v0, 7, v{vo}
    ''')

def w2base(a, so):
    a(f'''
    s_and_b32 s3, s2, 3
    s_mul_i32 s{so}, s3, {1152*4096}
    s_bfe_u32 s3, s2, 0x10002
    s_lshl_b32 s3, s3, 11
    s_add_u32 s{so}, s{so}, s3
    ''')

def w2unit(a, opt, sj, so):
    t = so + 1
    a(f's_and_b32 s{t}, s{sj}, 3\ns_lshl_b32 s{t}, s{t}, 1')
    if opt.get('rj', 0): a(f's_bfe_u32 s3, s{sj}, 0x30002\ns_add_u32 s{t}, s{t}, s3')
    a(f'''
    s_mul_i32 s{t}, s{t}, 9
    s_lshr_b32 s{t}, s{t}, 1
    s_lshr_b32 s3, s{sj}, 5
    s_add_u32 s{t}, s{t}, s3
    s_sub_u32 s3, s{t}, 36
    s_cselect_b32 s{t}, s{t}, s3
    s_lshl_b32 s{t}, s{t}, 9
    s_bfe_u32 s3, s{sj}, 0x30002
    s_add_u32 s{t}, s{t}, s3
    s_lshl_b32 s{t}, s{t}, 8
    s_add_u32 s{t}, s{t}, s{so}
    ''')

def w2pf(a, opt, sd, sj, so, vo, vd, stride):
    w2unit(a, opt, sj, so)
    a(f'buffer_load_dword v{vd}, v{vo}, s[{sd}:{sd+3}], s{so+1} offen\ns_add_u32 s{sj}, s{sj}, {stride}')

def spf_setup(a, opt):
    assert opt['spf'] + 108 <= 288
    a(f'''
    s_lshr_b32 s49, s2, 3
    s_lshl_b32 s49, s49, 2
    s_add_u32 s49, s49, s35
    s_add_u32 s49, s49, {opt['spf'] - 20}
    ''')
    w2base(a, 50); w2unit(a, opt, 49, 50)

def spf_row():
    return [f's_load_dwordx2 s[100:101], s[{PW2}:{PW2+1}], s51 offset:60', f's_load_dwordx2 s[100:101], s[{PW2}:{PW2+1}], s51 offset:188', 's_add_u32 s51, s51, 4096']

def fft(a, opt, L):
    fpf = [int(c, 16) for c in str(opt.get('fpf', 'x00000000'))[1:]] + [opt.get('fpre', 0)]
    f0 = opt.get('fpf0', 0)
    idle = a.lab('idle'); done = a.lab('fdone')
    def pf(pos):
        for k in range(fpf[pos]): w2pf(a, opt, 20, 49, 50, 5, 8, 40)
    a(f'''
    v_and_b32 v3, 31, v0
    v_lshrrev_b32 v4, 5, v0
    v_lshlrev_b32 v1, 4, v0
    v_add_u32 v2, {TB}, v1
    v_lshlrev_b32 v9, 2, v4
    s_and_b32 s41, s30, 1
    s_bfe_u32 s42, s30, 0x10001
    s_lshr_b32 s43, s30, 2
    s_lshl_b32 s44, s42, 5
    s_lshl_b32 s45, s41, 4
    s_cmp_eq_u32 s43, 0
    s_cselect_b32 s46, s44, 0
    s_cselect_b32 s47, 0, s44
    s_add_u32 s46, s46, s45
    v_add_u32 v10, s46, v9
    v_add_u32 v11, s47, v3
    v_cvt_f32_u32 v10, v10
    v_cvt_f32_u32 v11, v11
    v_mul_f32 v11, {fl(1/2048)}, v11
    v_mul_f32 v10, v10, v11
    s_lshr_b32 s3, s30, 1
    s_lshl_b32 s3, s3, 13
    s_lshl_b32 s46, s41, 11
    s_add_u32 s3, s3, s46
    v_add_u32 v12, s3, v2
    ''')
    G = TMP
    for j in range(8):
        a(f'v_fmamk_f32 v{G+j}, v11, {fl(float(OFFS[j]))}, v10' if j else f'v_mov_b32 v{G}, v10')
    for j in range(8):
        a(f'v_sin_f32 v{G+8+j}, v{G+j}')
        a(f'v_cos_f32 v{G+j}, v{G+j}')
    for cs in range(2):
        for q in range(2):
            a(f'ds_write_b128 v12, {vr(G + 8*cs + 4*q, 4)} offset:{L_TW + cs*4096 + q*1024}')
    a(f'''
    v_cvt_f32_u32 v13, s41
    v_mul_f32 v13, {fl(-0.25)}, v13
    v_add_u32 v11, s44, v3
    v_cvt_f32_u32 v11, v11
    v_mul_f32 v11, {fl(1/64)}, v11
    s_lshl_b32 s3, s43, 5
    v_add_u32 v10, s3, v9
    v_cvt_f32_u32 v10, v10
    v_fma_f32 v10, v10, v11, v13
    s_lshl_b32 s3, s41, 13
    s_lshl_b32 s46, s42, 12
    s_add_u32 s3, s3, s46
    s_lshl_b32 s46, s43, 11
    s_add_u32 s3, s3, s46
    v_add_u32 v12, s3, v2
    v_cvt_f32_u32 v15, v3
    v_mul_f32 v15, {fl(1/32)}, v15
    s_lshl_b32 s3, s42, 4
    v_add_u32 v14, s3, v9
    v_cvt_f32_u32 v14, v14
    v_fma_f32 v14, v14, v15, v13
    s_lshl_b32 s3, s41, 11
    s_lshl_b32 s46, s42, 10
    s_add_u32 s3, s3, s46
    v_add_u32 v13, s3, v2
    ''')
    G = TMP + 16
    for T in range(3):
        for j in range(8):
            k = OFFS[j] + (16 if T == 1 else 0)
            st, ba = (11, 10) if T < 2 else (15, 14)
            a(f'v_fmamk_f32 v{G+8*T+j}, v{st}, {fl(float(k))}, v{ba}' if k else f'v_mov_b32 v{G+8*T+j}, v{ba}')
    for j in range(24):
        a(f'v_cos_f32 v{G+j}, v{G+j}')
    for j in range(12):
        a(f'v_cvt_pk_bf16_f32 v{G+j}, v{G+2*j}, v{G+2*j+1}')
    a(f'ds_write_b128 v12, {vr(G,4)} offset:{L_F64}')
    a(f'ds_write_b128 v12, {vr(G+4,4)} offset:{L_F64 + 1024}')
    a(f'ds_write_b128 v13, {vr(G+8,4)} offset:{L_F32}')
    nc = a.lab('nc')
    a(f's_waitcnt vmcnt(0)\ns_cmp_ge_u32 s30, 4\ns_cbranch_scc1 {nc}')
    count_flag(a, 's98', 's99', 51, 10)
    a(f'{nc}:\ns_waitcnt lgkmcnt(0)')
    a('s_barrier')
    a(f'''
    s_and_b32 s31, s2, 7
    s_lshr_b32 s32, s2, 3
    s_lshl_b32 s49, s32, 3
    s_add_u32 s49, s49, s30
    s_add_u32 s49, s49, {f0}
    ''')
    w2pf_setup(a, 20, 49, 50, 5)
    a(f'''
    s_mul_i32 s33, s31, 5
    s_add_u32 s33, s33, s32
    s_cmp_ge_u32 s33, 37
    s_cbranch_scc1 {idle}
    ''')
    for k in range(4):
        a(f'ds_read_b128 {vr(C32 + 4*k, 4)}, v2 offset:{L_F32 + k*1024}')
    twread(a, 0, 0)
    for k in range(16):
        a(f'ds_read_b128 {vr(C64 + 4*k, 4)}, v2 offset:{L_F64 + k*1024}')
    a(f'''
    s_lshl_b32 s34, s33, 3
    s_min_u32 s34, s34, 281
    s_mul_i32 s41, s33, 57
    s_lshr_b32 s41, s41, 9
    s_min_u32 s41, s41, 3
    s_lshl_b32 s41, s41, 13
    s_add_u32 s41, s41, {FX}
    s_add_u32 s34, s34, s30
    v_lshrrev_b32 v6, 4, v0
    v_xor_b32 v6, v6, v0
    v_lshlrev_b32 v6, 4, v6
    v_xor_b32 v7, 64, v6
    v_lshlrev_b32 v9, 7, v0
    s_lshl_b32 s35, s34, 13
    s_lshl_b32 s39, s34, 13
    s_lshl_b32 s38, s30, 13
    s_add_u32 s42, s41, {FW - FX}
    s_cmp_eq_u32 s34, 0
    s_cselect_b32 s44, 0x0f0f0f0f, -1
    s_cselect_b32 s46, 0xf0f0f0f0, -1
    s_cmp_eq_u32 s34, 288
    s_cselect_b32 s44, 0xf0f0f0f0, s44
    s_cselect_b32 s46, 0x0f0f0f0f, s46
    s_cselect_b32 s35, 0, s35
    s_cselect_b32 s41, {FX}, s41
    s_cselect_b32 s3, 64, 0
    s_mov_b32 s45, s44
    s_mov_b32 s47, s46
    s_add_u32 s3, s3, s38
    s_add_u32 s40, s35, 4096
    s_mov_b32 s48, 0x80008000
    v_bfe_u32 v12, v0, 1, 3
    v_lshlrev_b32 v12, 4, v12
    v_lshl_add_u32 v12, v3, 7, v12
    v_xor_b32 v3, s3, v12
    v_lshlrev_b32 v4, 4, v4
    v_xor_b32 v12, v3, v4
    v_xor_b32 v13, 32, v12
    v_xor_b32 v14, 64, v12
    v_xor_b32 v15, 0x60, v12
    s_mov_b32 m0, s38
    ''')
    assert all((m*57) >> 9 == m // 9 for m in range(37))
    srd(a, 12, PWS, X1_SZ, X1_OFF)
    srd(a, 24, PWS, WT_SZ, WT_OFF)
    pf(8)
    poll(a, 9, 's41', 10)
    ts(a, opt, 5)
    for k in range(8):
        if k == 4: a('s_add_u32 m0, s38, 4096')
        a(f'buffer_load_dwordx4 v{6 + (k&1)}, s[12:15], s{40 if k >= 4 else 35} offen offset:{(k&3)*1024} sc1 lds')
    poll(a, 9, 's42', 10)
    a('s_waitcnt vmcnt(0) lgkmcnt(0)')
    for b in range(2):
        for t in range(2):
            a(f'ds_read_b128 {vr(XR + 8*b + 4*t, 4)}, v{12 + t} offset:{4096*b}')
            a(f'ds_read_b128 {vr(XI + 8*b + 4*t, 4)}, v{14 + t} offset:{4096*b}')
    srd(a, 12, PWS, Z_SZ, Z_OFF)
    a(f'''
    s_mov_b32 m0, s38
    v_lshrrev_b32 v7, 3, v0
    v_lshl_add_u32 v6, v7, 7, v6
    v_xor_b32 v7, 64, v6
    v_lshlrev_b32 v4, 1, v4
    s_waitcnt lgkmcnt(0)
    ''')
    for k in range(8):
        if k == 4:
            a('s_add_u32 m0, s38, 4096')
            a('s_add_u32 s39, s39, 4096')
        a(f'buffer_load_dwordx4 v1, s[24:27], s39 offen offset:{(k&3)*1024} sc1 lds')
    ts(a, opt, 6)
    nz = a.lab('nz')
    a(f'''
    v_add_u32 v1, s38, v1
    v_xor_b32 v12, v3, v4
    v_xor_b32 v13, 16, v12
    v_xor_b32 v14, 64, v12
    v_xor_b32 v15, 0x50, v12
    s_cmp_eq_u32 s44, -1
    s_cbranch_scc1 {nz}
    ''')
    for k in range(8): a(f'v_mov_b64 {vr(XI + 2*k, 2)}, 0')
    a(f'{nz}:')
    for k in range(16):
        a(f'v_xor_b32 v{XN+k}, s48, v{XR+k}')
    pf(0)
    def stage14(fwd):
        for b in range(2):
            for t in range(2):
                f = 8*b + 4*t
                mf(a, RE + 16*b, XR + f, C32 + 4*t, t == 0)
                mf(a, IM + 16*b, XI + f, C32 + 4*t, t == 0)
                mf(a, RE + 16*b, (XI if fwd else XN) + f, S32 + 4*t, False)
                mf(a, IM + 16*b, (XN if fwd else XR) + f, S32 + 4*t, False)
    stage14(True)
    cmul(a, 0, True, 'r', TMP)
    pf(1)
    twread(a, 0, 1)
    a('s_waitcnt lgkmcnt(0)')
    cmul(a, 1, True, 'r', TMP)
    def wread(b):
        for q in range(2):
            for ri in range(2):
                a(f'ds_read_b128 {vr(TMP + 32 + 8*ri + 4*q, 4)}, v1 offset:{(ri + 2*q + 4*b)*1024}')
    def wunpack():
        for k in range(16):
            a(f'v_lshlrev_b32 v{TMP + 2*k}, 16, v{TMP + 32 + k}')
            a(f'v_and_b32 v{TMP + 2*k + 1}, 0xffff0000, v{TMP + 32 + k}')
    a(f's_waitcnt vmcnt({fpf[0] + fpf[1]})')
    wread(0)
    pf(2)
    for b in range(2):
        for T in range(4):
            c = C64 + 16*b + 4*T; s = S64 + 16*b + 4*T
            mf(a, RE + 16*b, c, XR + 4*T, T == 0)
            mf(a, IM + 16*b, c, XI + 4*T, T == 0)
            mf(a, RE + 16*b, s, XI + 4*T, False)
            mf(a, IM + 16*b, s, XN + 4*T, False)
    a('s_waitcnt lgkmcnt(0)')
    wunpack()
    cmul(a, 0, False, 'i', TMP)
    pf(3)
    wread(1)
    a('s_waitcnt lgkmcnt(0)')
    wunpack()
    cmul(a, 1, False, 'i', TMP)
    twread(a, 1, 0)
    pf(4)
    for b in range(2):
        for T in range(4):
            c = C64 + 16*b + 4*T; s = S64 + 16*b + 4*T
            mf(a, RE + 16*b, XR + 4*T, c, T == 0)
            mf(a, IM + 16*b, XI + 4*T, c, T == 0)
            mf(a, RE + 16*b, XN + 4*T, s, False)
            mf(a, IM + 16*b, XR + 4*T, s, False)
    a('s_waitcnt lgkmcnt(0)')
    cmul(a, 0, False, 'i', TMP)
    pf(5)
    twread(a, 1, 1)
    a('s_waitcnt lgkmcnt(0)')
    cmul(a, 1, False, 'i', TMP)
    pf(6)
    stage14(False)
    if opt.get('tsf'): ts(a, opt, 1)
    for b in range(2):
        for ri, src in enumerate((RE, IM)):
            o = TMP + 16*b + 8*ri
            for k in range(8):
                a(f'v_cvt_pk_bf16_f32 v{o+k}, v{src + 16*b + 2*k}, v{src + 16*b + 2*k + 1}')
            for q in range(2):
                a(f'ds_write_b128 v{12 + 2*ri + q}, {vr(o + 4*q, 4)} offset:{4096*b}')
        for k in range(4*b, 4*b + 4):
            a(f'ds_read_b128 {vr(XR + 4*k, 4)}, v1 offset:{1024*k}')
    for par in range(2):
        a(f's_mov_b64 exec, s[{44 + 2*par}:{45 + 2*par}]')
        for k in range(par, 8, 2):
            if par == 0: a(f's_waitcnt lgkmcnt({(12 if k < 4 else 8) - k - 2})')
            a(f'buffer_store_dwordx4 {vr(XR + 4*k, 4)}, v{6 + par}, s[12:15], s{40 if k & 2 else 35} offen offset:{par*2048 + (k >> 2)*128} sc1')
    a('s_mov_b64 exec, -1')
    a(f'''
    s_lshl_b32 s41, s33, 7
    s_add_u32 s41, s41, {FZ}
    s_waitcnt vmcnt(0)
    s_barrier
    s_cmp_lg_u32 s30, 0
    s_cbranch_scc1 {done}
    s_mov_b64 exec, 1
    ''')
    flag_store(a, 41, 10)
    a('s_mov_b64 exec, -1')
    a(f's_branch {done}')
    a(f'{idle}:')
    a(f's_mov_b32 s41, {FX + 3*8192}\nv_lshlrev_b32 v9, 7, v0')
    pf(8)
    poll(a, 9, 's41', 10)
    for k in range(7): pf(k)
    a('s_waitcnt vmcnt(0)')
    a(f'{done}:')
    if opt.get('tsf'): ts(a, opt, 2)
    a(f'''
    s_and_b32 s35, s30, 3
    s_cmp_ge_u32 s30, 4
    s_cbranch_scc1 {L["tabs"]}
    ''')
    if fpf[7]:
        a(f'''
        s_lshl_b32 s49, s32, 2
        s_add_u32 s49, s49, s30
        s_add_u32 s49, s49, {f0 + 40*(sum(fpf[:7]) + fpf[8])}
        ''')
        w2pf_setup(a, 20, 49, 50, 5)
        for k in range(fpf[7]): w2pf(a, opt, 20, 49, 50, 5, 250, 20)
    for k in range(opt.get('lw1', opt.get('dw', 7)) + 2): a('s_barrier')
    a(f's_branch {L["c2"]}')
```

```python
from common import *

US, NU = 9216, 7
WB, WSL, NW = 65536, 8192, 12
CNT3 = US * NU
OWN = WB + 5 * WSL
ZB = WB
NST = 36
G = 40; AC = 16

def ids(a):
    a('''
    s_and_b32 s31, s2, 3
    s_bfe_u32 s33, s2, 0x10002
    s_lshl_b32 s33, s33, 3
    s_lshr_b32 s3, s2, 5
    s_add_u32 s33, s33, s3
    s_lshl_b32 s34, s33, 2
    s_add_u32 s34, s34, s29
    ''')

def consumer(a, opt):
    ACC = 32; P = 104; Q = 176
    ids(a)
    a(f'''
    v_and_b32 v7, 15, v0
    v_lshrrev_b32 v8, 4, v0
    v_lshlrev_b32 v1, 4, v0
    v_lshrrev_b32 v2, 2, v7
    v_lshl_add_u32 v2, v8, 2, v2
    v_and_b32 v3, 7, v2
    s_lshl_b32 s3, s30, 1
    v_xor_b32 v3, s3, v3
    v_lshlrev_b32 v2, 8, v2
    v_lshl_add_u32 v2, v3, 5, v2
    v_and_b32 v3, 3, v7
    v_lshl_add_u32 v2, v3, 3, v2
    v_add_u32 v2, {WB}, v2
    v_xor_b32 v3, 32, v2
    v_mov_b32 v9, {CNT3}
    v_mov_b32 v10, 0
    ds_write_b32 v9, v10
    ''')
    for k in range(36):
        a(f'v_mov_b64 {vr(ACC + 2*k, 2)}, 0')
    def reads(buf, r):
        o = [f'ds_read_b64_tr_b16 {vr(Q + buf*8 + cb*4 + 2*rd, 2)}, v{r+1+cb} offset:{rd*4096}' for cb in range(2) for rd in range(2)]
        p = [f'ds_read_b128 {vr(P + buf*36 + 4*f, 4)}, v{r} offset:{f*1024}' for f in range(9)]
        return p[:1] + o + p[1:]
    def adv():
        return [f's_add_u32 s40, s40, {US}', f's_cmp_eq_u32 s40, {NU*US}', 's_cselect_b32 s40, 0, s40',
                f's_add_u32 s44, s44, {WSL}', f's_cmp_eq_u32 s44, {NW*WSL}', 's_cselect_b32 s44, 0, s44',
                'v_add_u32 v4, s40, v1', 'v_add_u32 v5, s44, v2', 'v_add_u32 v6, s44, v3']
    a(f'''
    s_lshl_b32 s3, s34, 2
    s_add_u32 s43, s3, s31
    s_add_u32 s3, s3, s30
    s_lshl_b32 s3, s3, 2
    s_add_u32 s3, s3, s31
    s_mul_i32 s42, s3, 9216
    s_lshl_b32 s43, s43, 7
    s_add_u32 s43, s43, {FE}
    s_mov_b32 s40, 0
    s_mov_b32 s44, 0
    s_mov_b32 s41, {NST//2}
    ''')
    srd(a, 12, PWS, XB_SZ, XB_OFF)
    for x in adv(): a(x)
    a('s_barrier')
    ts(a, opt, 7)
    for x in reads(0, 1): a(x)
    loop = a.lab('g2loop')
    a(f'{loop}:')
    if opt.get('tsl') == 2:
        sk = a.lab('sk')
        a(f's_and_b32 s3, s41, 3\ns_cmp_lg_u32 s3, 2\ns_cbranch_scc1 {sk}')
        a('s_mov_b64 s[78:79], s[80:81]\ns_mov_b64 s[80:81], s[82:83]\ns_mov_b64 s[82:83], s[84:85]')
        ts(a, opt, 4)
        a(f'{sk}:')
    for par in range(2):
        a('s_waitcnt lgkmcnt(0)')
        a('s_barrier')
        rd = reads(par ^ 1, 4)
        ad = adv()
        k = 0
        for f in range(9):
            for cb in range(2):
                ac = vr(ACC + (f*2 + cb)*4, 4)
                a(f'v_mfma_f32_16x16x32_bf16 {ac}, {vr(P + par*36 + 4*f, 4)}, {vr(Q + par*8 + cb*4, 4)}, {ac}')
                if k < 13: a(rd[k])
                if k in (11, 12):
                    for x in ad[3*k - 33:3*k - 30]: a(x)
                if 13 <= k < 16: a(ad[k - 7])
                if k == 16 and par == 1:
                    a('s_sub_u32 s41, s41, 1')
                    a('s_cmp_lg_u32 s41, 0')
                k += 1
    a(f's_cbranch_scc1 {loop}')
    ts(a, opt, 8)
    own = a.lab('g2own'); join = a.lab('g2join')
    a(f'''
    s_cmp_eq_u32 s30, s31
    s_cbranch_scc1 {own}
    ''')
    O = 192
    for j in range(3):
        for cb in range(2):
            for i in range(3):
                ac = ACC + ((3*j + i)*2 + cb)*4
                for p in range(2):
                    a(f'v_cvt_pk_bf16_f32 v{O + j*12 + cb*6 + i*2 + p}, v{ac+2*p}, v{ac+2*p+1}')
        for p in range(3):
            a(f'buffer_store_dwordx4 {vr(O + j*12 + 4*p, 4)}, v1, s[12:15], s42 offen offset:{p*1024} sc1')
        if j < 2: a('s_add_u32 s42, s42, 3072')
    a(f's_branch {join}')
    a(f'{own}:')
    a('s_nop 7')
    a(f'v_add_u32 v4, {OWN}, v1')
    for k in range(18):
        a(f'ds_write_b128 v4, {vr(ACC + 4*k, 4)} offset:{k*1024}')
    a(f'{join}:')
    a('s_waitcnt vmcnt(0) lgkmcnt(0)')
    count_flag(a, CNT3, 4, 43, 10)
    ts_flush(a, opt)
    a('s_endpgm')

def tables(a, opt):
    gl = ['v_and_b32 v7, 15, v0', 'v_lshrrev_b32 v8, 4, v0',
        'v_lshrrev_b32 v4, 2, v7', 'v_mul_u32_u24 v4, 12, v4', 'v_and_b32 v9, 3, v7', 'v_add_u32 v4, v4, v9',
        's_mul_i32 s6, s29, 3', 's_add_u32 s6, s6, s35', 's_mul_i32 s6, s6, 48', 'v_add_u32 v4, s6, v4', 'v_cvt_f32_u32 v4, v4',
        'v_lshlrev_b32 v14, 1, v8', 'v_cvt_f32_u32 v14, v14',
        'v_lshlrev_b32 v15, 31, v7', 'v_or_b32 v15, 0x3f003f00, v15', 's_mov_b64 s[4:5], 0xffff']
    offs = [8*(j >> 2) + ((j & 3) >> 1) for j in range(8)]
    for i in range(3):
        gl.append(f'v_add_f32 v5, {fl(4.0*i)}, v4')
        gl.append(f'v_mul_f32 v5, {fl(1/576)}, v5')
        gl.append('v_mul_f32 v6, v5, v14')
        gl.append(f'v_add_f32 v11, {fl(0.25)}, v6')
        gl += cos_table(a, [G + (T*3 + i)*4 for T in range(18)], 5, 6, AC, 12, offs, 16, base_odd=11)
        gl.append(f'v_cndmask_b32 v{G + i*4}, v{G + i*4}, v15, s[4:5]')
    gl += ['v_lshrrev_b32 v9, 2, v7', 'v_lshlrev_b32 v4, 6, v9', 'v_lshl_add_u32 v4, v8, 8, v4', 'v_and_b32 v9, 1, v7',
           'v_lshl_add_u32 v4, v9, 5, v4', 'v_and_b32 v9, 1, v8', 'v_lshl_add_u32 v4, v9, 4, v4', 'v_bfe_u32 v9, v7, 1, 1',
           'v_lshl_add_u32 v14, v9, 3, v4', f'v_add_u32 v14, {ZB}, v14', 'v_xor_b32 v15, 16, v14']
    return gl

def emit_steps(a, steps):
    i = 0
    while i < len(steps):
        j = i
        while j < len(steps) and steps[j] == steps[i]: j += 1
        if j - i >= 3:
            lp = a.lab('g2l')
            a(f's_mov_b32 s46, {j - i}')
            a(f'{lp}:')
            for x in steps[i]: a(x)
            a(f's_sub_u32 s46, s46, 1\ns_cmp_lg_u32 s46, 0\ns_cbranch_scc1 {lp}')
        else:
            for k in range(i, j):
                for x in steps[k]: a(x)
        i = j

class Q:
    def __init__(s): s.q = []
    def add(s, dl, n): s.q += [dl] * n
    def wait(s, bar):
        k = max([k + 1 for k, x in enumerate(s.q) if x <= bar], default=0)
        if k == 0: return []
        s.q = s.q[k:]
        return [f's_waitcnt vmcnt({min(63, len(s.q))})']

def sched(a, opt, wdma, nw, udma, zdma, fill, mid):
    DW = opt.get('dw', 7); LW = opt.get('lw1', DW); LW2 = opt.get('lw2', 12)
    wpf = [int(c, 16) for c in str(opt.get('wpf', 'x222233445567'))[1:]]
    assert len(wpf) <= LW2 and wpf == sorted(wpf) and all(p >= k - 4 for k, p in enumerate(wpf)) and 25 + wpf[0] >= 32 - LW
    C = lambda i: 35 + i
    q = Q()
    for st in range(33 - LW, 32): q.add(st - 1, 4)
    steps = []
    nxt = 0
    for b in range(32 - LW, 34):
        s = q.wait(b) + ['s_barrier']
        while nxt < len(wpf) and 25 + wpf[nxt] == b:
            s += wdma(); q.add(C(nxt - 1), nw); nxt += 1
        steps.append(s)
    emit_steps(a, steps)
    g0 = opt.get('g0', 0)
    for x in fill[:g0]: a(x)
    fill = fill[g0:]
    if mid(): q.q = []
    steps = []
    for k in range(LW2):
        s = []
        if k < NU and udma: s += udma(); q.add(C(k - 1), 3)
        if k >= nxt: s += wdma(); q.add(C(k - 1), nw)
        if s: steps.append(s)
    emit_steps(a, steps)
    steps = []
    per = (len(fill) + NST - 3) // (NST - 2)
    for i in range(-1, NST):
        s = q.wait(C(i)) + ['s_barrier']
        if i >= 0:
            if i + NU < NST and udma: s += udma(); q.add(C(i + NU - 1), 3)
            if i + LW2 < NST: s += wdma(); q.add(C(i + LW2 - 1), nw)
            z0 = opt.get('z0', 24)
            if z0 <= i < z0 + 5:
                n = 2 if i < z0 + 4 else 1
                s += zdma() * n; q.add(C(NST - 1), n)
            s += fill[i*per:(i+1)*per]
        steps.append(s)
    emit_steps(a, steps)

def loaders(a, opt, fill):
    l7 = a.lab('g2w7')
    usc = ' sc1' if opt.get('usc', 1) else ''
    ids(a)
    a(f'''
    v_and_b32 v34, 15, v0
    v_lshrrev_b32 v35, 4, v0
    v_lshrrev_b32 v32, 1, v34
    v_xor_b32 v32, v32, v35
    v_lshlrev_b32 v32, 5, v32
    v_and_b32 v34, 1, v34
    v_lshl_add_u32 v32, v34, 4, v32
    v_lshl_add_u32 v32, v35, 12, v32
    s_mul_i32 s41, s31, {1152*4096}
    s_lshl_b32 s3, s33, 8
    s_add_u32 s41, s41, s3
    v_lshrrev_b32 v33, 3, v0
    v_lshlrev_b32 v33, 13, v33
    v_and_b32 v35, 1, v35
    v_and_b32 v34, 7, v0
    v_xor_b32 v34, v34, v35
    v_lshl_add_u32 v33, v34, 4, v33
    s_lshl_b32 s44, s33, 9
    s_lshl_b32 s3, s31, 7
    s_add_u32 s44, s44, s3
    s_lshl_b32 s3, s35, 16
    s_add_u32 s44, s44, s3
    s_lshl_b32 s39, s35, 10
    s_add_u32 s39, s39, {WB}
    s_mov_b32 s45, s39
    s_add_u32 s47, s39, {NW*WSL}
    s_mov_b32 s48, s39
    s_lshr_b32 s3, s2, {5 if opt.get('rj', 0) else 8}
    s_lshl_b32 s51, s29, 1
    s_add_u32 s51, s51, s3
    s_mul_i32 s51, s51, {9 if opt.get('rot2', 1) else 0}
    s_lshr_b32 s51, s51, 1
    s_sub_u32 s3, s51, 36
    s_cselect_b32 s51, s51, s3
    ''')
    wrot = f's_mov_b32 s37, s41\ns_add_u32 s40, s41, {NST*32*4096}\ns_lshl_b32 s3, s51, 17\ns_add_u32 s41, s41, s3'
    srd(a, 12, PW2, 0 if opt.get('now2') else F * S * 2)
    srd(a, 20, PWS, Z_SZ, Z_OFF)
    zdma = lambda: ['s_mov_b32 m0, s45', 's_add_u32 s45, s45, 4096', 'buffer_load_dwordx4 v33, s[20:23], s44 offen sc1 lds', f's_add_u32 s44, s44, {4*65536}']
    wadv = [f's_add_u32 s41, s41, {32*4096}', 's_cmp_eq_u32 s41, s40', 's_cselect_b32 s41, s37, s41', 's_cmp_eq_u32 s39, s47', 's_cselect_b32 s39, s48, s39']
    a(f's_cmp_eq_u32 s30, 7\ns_cbranch_scc1 {l7}')
    a(f'''
    s_and_b32 s3, s35, 1
    s_lshl_b32 s3, s3, 7
    v_xor_b32 v32, s3, v32
    s_lshl_b32 s3, s35, 14
    s_add_u32 s41, s41, s3
    v_lshlrev_b32 v1, 4, v0
    s_mul_i32 s36, s29, 3
    s_add_u32 s36, s36, s35
    s_lshl_b32 s3, s36, 2
    s_add_u32 s3, s3, s31
    s_mul_i32 s43, s3, {36*3072}
    s_mul_i32 s3, s3, {18*128}
    s_add_u32 s3, s3, {FU}
    v_lshlrev_b32 v34, 7, v0
    v_add_u32 v35, {FZ - 18*128}, v34
    v_min_u32 v35, {FZ + 36*128}, v35
    v_add_u32 v34, s3, v34
    v_cmp_gt_u32 vcc, 18, v0
    v_cndmask_b32 v34, v35, v34, vcc
    s_mul_i32 s38, s35, 3072
    s_add_u32 s49, s38, {NU*US}
    s_mov_b32 s50, s38
    s_mov_b32 s28, s43
    s_add_u32 s32, s43, {NST*3072}
    s_mul_i32 s3, s51, 3072
    s_add_u32 s43, s43, s3
    {wrot}
    ''')
    srd(a, 16, PWS, 0 if opt.get('nou') else U_SZ, U_OFF)
    wdma = lambda: ['s_mov_b32 m0, s39', f's_add_u32 s39, s39, {WSL}', 'buffer_load_dwordx4 v32, s[12:15], s41 offen lds'] + wadv
    udma = lambda: ['s_mov_b32 m0, s38', f's_add_u32 s38, s38, {US}'] + \
        [f'buffer_load_dwordx4 v1, s[16:19], s43 offen offset:{k*1024}{usc} lds' for k in range(3)] + \
        ['s_add_u32 s43, s43, 3072', 's_cmp_eq_u32 s43, s32', 's_cselect_b32 s43, s28, s43', 's_cmp_eq_u32 s38, s49', 's_cselect_b32 s38, s50, s38']
    def mid():
        if not opt.get('tsf'): ts(a, opt, 5)
        poll(a, 34, '0', 36)
        a('s_waitcnt lgkmcnt(0)')
        if not opt.get('tsf'): ts(a, opt, 6)
        return True
    sched(a, opt, wdma, 1, udma, zdma, fill, mid)
    ts(a, opt, 7)
    E = 64
    free = [2, 6, 10]
    zr = {}; nxt = 0
    def zissue(limit):
        nonlocal nxt
        while free and nxt < 36 and nxt < limit:
            T, cb = nxt >> 1, nxt & 1
            r = free.pop(0); zr[nxt] = r
            for rd in range(2):
                a(f'ds_read_b64_tr_b16 {vr(r + 2*rd, 2)}, v{14 + cb} offset:{T*2048 + rd*1024}')
            nxt += 1
    zissue(3)
    ep = f'''
    v_and_b32 v{E}, 15, v0
    v_lshrrev_b32 v{E+1}, 4, v0
    v_lshlrev_b32 v{E+2}, 8, v{E}
    v_lshlrev_b32 v{E+3}, 1, v{E}
    s_and_b32 s3, s31, 1
    s_lshl_b32 s40, s3, 13
    s_lshl_b32 s41, s33, 1
    s_lshr_b32 s3, s31, 1
    s_add_u32 s41, s41, s3
    s_lshl_b32 s3, s41, 3
    s_add_u32 s40, s40, s3
    s_add_u32 s42, s40, 4096
    s_lshl_b32 s41, s33, 2
    s_add_u32 s41, s41, s31
    s_lshl_b32 s43, s41, 6
    buffer_load_dwordx2 v[{E+4}:{E+5}], v{E+2}, s[12:15], s40 offen sc1
    buffer_load_dwordx2 v[{E+6}:{E+7}], v{E+2}, s[12:15], s42 offen sc1
    buffer_load_ushort v{E+8}, v{E+3}, s[16:19], s43 offen
    buffer_load_ushort v{E+9}, v{E+3}, s[16:19], s43 offen offset:32
    v_and_b32 v{E+10}, 3, v0
    v_lshlrev_b32 v{E+10}, 7, v{E+10}
    s_lshl_b32 s44, s34, 9
    s_add_u32 s44, s44, {FE}
    s_mul_i32 s3, s35, 6144
    s_add_u32 s3, s3, {OWN}
    v_add_u32 v{E+13}, s3, v1
    s_lshl_b32 s3, s34, 2
    s_add_u32 s3, s3, s31
    s_mul_i32 s45, s3, {4*9216}
    s_mul_i32 s3, s35, 3072
    s_add_u32 s45, s45, s3
    v_mul_u32_u24 v{E+11}, 1152, v{E}
    v_mul_u32_u24 v{E+12}, 24, v{E+1}
    v_add_u32 v{E+11}, v{E+11}, v{E+12}
    s_mul_i32 s46, s41, {32*1152}
    s_mul_i32 s3, s36, 96
    s_add_u32 s46, s46, s3
    s_add_u32 s47, s46, {16*1152}
    '''
    for T in range(18):
        a(f's_waitcnt lgkmcnt({min(15, 2*(nxt - 2*T - 2))})')
        for i in range(3):
            for cb in range(2):
                ac = vr(AC + (cb*3 + i)*4, 4)
                a(f'v_mfma_f32_16x16x32_bf16 {ac}, {vr(G + (T*3 + i)*4, 4)}, {vr(zr[2*T + cb], 4)}, {"0" if T == 0 else ac}')
            if not E <= G + (T*3 + i)*4 < E + 16: free.append(G + (T*3 + i)*4)
            zissue(min(2*T + 8, nxt + 1))
        free += [zr[2*T], zr[2*T + 1]]
        if T == 2:
            srd(a, 12, PWS, G_SZ, G_OFF)
            srd(a, 16, PB2, S * 2)
            srd(a, 24, PWS, XB_SZ, XB_OFF)
        if T == 4: a(ep)
        if T == 6:
            for k in range(1, 4):
                a(f's_add_u32 s3, s31, {k}')
                a('s_and_b32 s3, s3, 3')
                a('s_mul_i32 s3, s3, 9216')
                a(f's_add_u32 s{47+k}, s45, s3')
            srd(a, 20, PO, S * D * 2)
    a('s_waitcnt vmcnt(0)')
    for cb in range(2):
        a(f'v_lshlrev_b32 v{E+8+cb}, 16, v{E+8+cb}')
        a(f'v_mul_f32 v{E+8+cb}, v{E+8+cb}, v{E+5+2*cb}')
        for k in range(12):
            a(f'v_fma_f32 v{AC + cb*12 + k}, v{AC + cb*12 + k}, v{E+4+2*cb}, v{E+8+cb}')
    poll(a, E + 10, 's44', E + 14)
    ts(a, opt, 8)
    R = 96; W = 144
    for k in range(3):
        for p in range(3):
            a(f'buffer_load_dwordx4 {vr(R + k*12 + 4*p, 4)}, v1, s[24:27], s{48+k} offen offset:{p*1024} sc1')
    for i in range(3):
        for cb in range(2):
            a(f'ds_read_b128 {vr(W + cb*12 + i*4, 4)}, v{E+13} offset:{(i*2 + cb)*1024}')
    a('s_waitcnt lgkmcnt(0)')
    for k in range(3):
        a(f's_waitcnt vmcnt({6 - 3*k})')
        for q in range(12):
            a(f'v_lshlrev_b32 v{E+14}, 16, v{R + k*12 + q}')
            a(f'v_and_b32 v{E+15}, 0xffff0000, v{R + k*12 + q}')
            a(f'v_pk_add_f32 {vr(W + 2*q, 2)}, {vr(W + 2*q, 2)}, {vr(E+14, 2)}')
    for cb in range(2):
        for k in range(12):
            a(f'v_fma_f32 v{AC + cb*12 + k}, v{W + cb*12 + k}, v{E+5+2*cb}, v{AC + cb*12 + k}')
        for k in range(6):
            a(f'v_cvt_pk_bf16_f32 v{R + cb*8 + k + (k >= 3)}, v{AC + cb*12 + 2*k}, v{AC + cb*12 + 2*k + 1}')
        for hf in range(2):
            a(f'buffer_store_dwordx3 {vr(R + cb*8 + 4*hf, 3)}, v{E+11}, s[20:23], s{46+cb} offen offset:{12*hf}')
    fin = a.lab('fin')
    a(f'''
    s_add_u32 s3, s2, s35
    s_cmp_lg_u32 s3, 0
    s_cbranch_scc1 {fin}
    s_mov_b64 exec, 1
    ''')
    flag_store(a, 3, 2)
    a('s_mov_b64 exec, -1')
    a(f'{fin}:')
    ts_flush(a, opt)
    a('s_endpgm')
    a(f'{l7}:')
    a(wrot)
    a('v_xor_b32 v38, 128, v32')
    for k, g in enumerate((4, 5, 6, 7)):
        a(f'v_add_u32 v{34+k}, {g*4*4096 - k*1024}, v{38 if g & 1 else 32}')
    a(f'v_add_u32 v32, {3*4*4096}, v38')
    wdma = lambda: ['s_mov_b32 m0, s39', 's_add_u32 s42, s39, 1024', 'buffer_load_dwordx4 v32, s[12:15], s41 offen lds', 's_mov_b32 m0, s42', f's_add_u32 s39, s39, {WSL}'] + \
        [f'buffer_load_dwordx4 v{34+k}, s[12:15], s41 offen offset:{k*1024} lds' for k in range(4)] + wadv
    sched(a, opt, wdma, 5, None, zdma, [], lambda: False)
    ts_flush(a, opt)
    a('s_endpgm')
```

```python
import sys, os, importlib
sys.path.insert(0, os.path.dirname(os.path.abspath(__file__)))
from common import *
import kf

def build(opt):
    ref = open('gated_mix__spectral_gfnet__mixer_token_mlp__prompt.s.ref').read().split('\n')
    head = [l for l in ref if l.startswith(';') and '@launch' not in l and 'Override' not in l and 'grid=ceil' not in l]
    c, d, l = kf.gen(opt)
    return '\n'.join(head + [l]) + '\n.amdgcn_target "amdgcn-amd-amdhsa--gfx950"\n.text\n' + c + '.section .rodata,"a"\n.p2align 6\n' + d

if __name__ == '__main__':
    opt = dict(x.split('=') for x in sys.argv[2:])
    opt = {k: int(v) if v.lstrip('-').isdigit() else v for k, v in opt.items()}
    open(sys.argv[1], 'w').write(build(opt))
```
